```python
import torch

def _softmax(x, axis=-1):
    return torch.softmax(x, dim=axis)
def _gelu(x):
    return torch.nn.functional.gelu(x, approximate="tanh")
def _silu(x):
    return torch.nn.functional.silu(x)
def _sigmoid(x):
    return torch.sigmoid(x)
def _layernorm(x, axis=-1, eps=1e-5):
    m = x.mean(dim=axis, keepdim=True)
    v = x.var(dim=axis, keepdim=True, unbiased=False)
    return (x - m) / torch.sqrt(v + eps)
def _scatter_add(tgt, idx, src, axis=0):
    return tgt.clone().index_add_(axis, idx, src)
def _segment_sum(src, seg, n):
    out = torch.zeros((n,) + src.shape[1:], dtype=src.dtype)
    return out.index_add_(0, seg, src)
def _pad(x, pw):
    flat = tuple(v for pair in reversed(pw) for v in pair)
    return torch.nn.functional.pad(x, flat)

kernel_name = 'parallel_sum__ssm_conv_s4__glu_gated_bilinear__prompt'

def setup_inputs():

    _w = (lambda a: (lambda t: t.to(torch.bfloat16) if t.is_floating_point() else t)(torch.as_tensor(a)))
    def _A_setup():
        B, L, D, N = 1, 2048, 448, 256
        A_re = -(lambda _x: torch.exp(torch.as_tensor(_x)))((lambda *s: torch.randn(*s, dtype=torch.bfloat16) * 6.4)(D, N))
        A_im = torch.pi * (lambda *s: torch.randn(*s, dtype=torch.bfloat16) * 0.05)(D, N)
        B_re = (lambda *s: torch.randn(*s, dtype=torch.bfloat16) * 0.1)(D, N)
        B_im = (lambda *s: torch.randn(*s, dtype=torch.bfloat16) * 0.1)(D, N)
        C_re = (lambda *s: torch.randn(*s, dtype=torch.bfloat16) * 0.1)(D, N)
        C_im = (lambda *s: torch.randn(*s, dtype=torch.bfloat16) * 0.1)(D, N)
        log_dt = (lambda *s: torch.randn(*s, dtype=torch.bfloat16) * 0.05)(D) * 0.5 - 4.0
        Dskip = (lambda *s: torch.randn(*s, dtype=torch.bfloat16) * 0.05)(D)
        return {
            "u": _w((lambda *s: torch.randn(*s, dtype=torch.bfloat16) * 0.05)(B, L, D)),
            "A_re": _w(A_re),
            "A_im": _w(A_im),
            "B_re": _w(B_re),
            "B_im": _w(B_im),
            "C_re": _w(C_re),
            "C_im": _w(C_im),
            "log_dt": _w(log_dt),
            "Dskip": _w(Dskip),
        }
    _A_in = _A_setup()

    def _B_setup():
        B, S, D, F = 1, 2048, 448, 1792
        return {
            "x": _w((lambda *s: torch.randn(*s, dtype=torch.bfloat16) * 0.05)(B, S, D)),
            "w_gate": _w((lambda *s: torch.randn(*s, dtype=torch.bfloat16) * 0.4)(D, F) * (D ** -0.5)),
            "w_up": _w((lambda *s: torch.randn(*s, dtype=torch.bfloat16) * 0.4)(D, F) * (D ** -0.5)),
            "w_down": _w((lambda *s: torch.randn(*s, dtype=torch.bfloat16) * 0.4)(F, D) * (F ** -0.5)),
        }
    _B_in = _B_setup()

    return {
        "A_u": _A_in["u"],
        "A_A_re": _A_in["A_re"],
        "A_A_im": _A_in["A_im"],
        "A_B_re": _A_in["B_re"],
        "A_B_im": _A_in["B_im"],
        "A_C_re": _A_in["C_re"],
        "A_C_im": _A_in["C_im"],
        "A_log_dt": _A_in["log_dt"],
        "A_Dskip": _A_in["Dskip"],
        "B_x": _B_in["x"],
        "B_w_gate": _B_in["w_gate"],
        "B_w_up": _B_in["w_up"],
        "B_w_down": _B_in["w_down"],
    }

def reference(A_u, A_A_re, A_A_im, A_B_re, A_B_im, A_C_re, A_C_im, A_log_dt, A_Dskip, B_x, B_w_gate, B_w_up, B_w_down):
    def _A_ref(u, A_re, A_im, B_re, B_im, C_re, C_im, log_dt, Dskip):
        Bsz, L, D = u.shape
        dt = torch.exp(log_dt)[:, None]
        A = A_re + 1j * A_im
        Bc = B_re + 1j * B_im
        Cc = C_re + 1j * C_im
        logdA = dt * A
        dB = dt * Bc
        l = (lambda x, dt: x.to(dt))(torch.arange(L), A_re.dtype)
        P = torch.exp(logdA[:, :, None] * l[None, None, :])
        K = torch.einsum("dn,dnl,dn->dl", Cc, P, dB).real
        L2 = 2 * L
        Kp = _pad(K, ((0, 0), (0, L)))
        up = (lambda x, *d: x.permute(*d))(u, 0, 2, 1)
        up = _pad(up, ((0, 0), (0, 0), (0, L)))
        Kf = (lambda x, axes=(-2,-1): torch.fft.rfft2(x.float(), dim=axes))(Kp[:, None, :], axes=(-2, -1))
        Uf = (lambda x, axes=(-2,-1): torch.fft.rfft2(x.float(), dim=axes))(up[:, :, None, :], axes=(-2, -1))
        Yf = Uf * Kf[None, :, :, :]
        y = (lambda x, s, axes=(-2,-1): torch.fft.irfft2(x, s=s, dim=axes).to(torch.bfloat16))(Yf, (1, L2), axes=(-2, -1))[:, :, 0, :L]
        y = (lambda x, *d: x.permute(*d))(y, 0, 2, 1) + u * Dskip[None, None, :]
        return y

    def _B_ref(x, w_gate, w_up, w_down):
        g = torch.einsum("bsd,df->bsf", x, w_gate)
        u = torch.einsum("bsd,df->bsf", x, w_up)
        h = g * u
        return torch.einsum("bsf,fd->bsd", h, w_down)

    x = A_u
    xn = _layernorm(x, axis=-1)
    return x + _A_ref(xn, A_A_re, A_A_im, A_B_re, A_B_im, A_C_re, A_C_im, A_log_dt, A_Dskip) + _B_ref(xn, B_w_gate, B_w_up, B_w_down)
```

```python
import re

_REG = re.compile(r'\b([vas])(\d+)\b|\b([vas])\[(\d+):(\d+)\]|\b(vcc|exec|m0|scc)\b')

def regs_of(op):
    out = set()
    for m in _REG.finditer(op):
        if m.group(1):
            out.add((m.group(1), int(m.group(2))))
        elif m.group(3):
            for i in range(int(m.group(4)), int(m.group(5)) + 1):
                out.add((m.group(3), i))
        else:
            out.add((m.group(6), 0))
    return out

TRANS = ('v_exp_f32', 'v_log_f32', 'v_rcp_f32', 'v_rsq_f32', 'v_sqrt_f32', 'v_sin_f32', 'v_cos_f32')

class Ins:
    __slots__ = ('text', 'mn', 'ops', 'dst', 'src', 'kind', 'passes', 'srcC', 'srcAB', 'is_label', 'nop')
    def __init__(self, text):
        self.text = text
        t = text.split(';')[0].strip()
        self.is_label = t.endswith(':')
        self.nop = 0
        self.dst = set(); self.src = set(); self.srcC = set(); self.srcAB = set()
        self.kind = 'other'; self.passes = 0
        if self.is_label or not t or t.startswith('.'):
            self.mn = ''; self.ops = []; self.kind = 'label' if self.is_label else 'none'
            return
        parts = t.split(None, 1)
        self.mn = mn = parts[0]
        rest = parts[1] if len(parts) > 1 else ''
        ops = []; depth = 0; cur = ''
        for ch in rest:
            if ch == '[': depth += 1
            if ch == ']': depth -= 1
            if ch == ',' and depth == 0:
                ops.append(cur.strip()); cur = ''
            else:
                cur += ch
        if cur.strip(): ops.append(cur.strip())
        self.ops = ops
        if mn == 's_nop':
            self.kind = 'nop'; self.nop = int(ops[0], 0) + 1; return
        if mn.startswith('v_mfma'):
            self.kind = 'mfma'
            self.passes = 8 if '32x32x16' in mn else 4 if '16x16x32' in mn else 16
            self.dst = regs_of(ops[0]); self.srcAB = regs_of(ops[1]) | regs_of(ops[2]); self.srcC = regs_of(ops[3])
            self.src = self.srcAB | self.srcC
            return
        if mn.startswith('v_'):
            self.kind = 'valu'
            if mn.startswith('v_cmp'):
                self.dst = regs_of(ops[0]); self.src = set().union(*[regs_of(o) for o in ops[1:]])
                if mn.startswith('v_cmpx'): self.dst |= {('exec', 0)}
            elif mn.startswith('v_permlane'):
                self.dst = regs_of(ops[0]) | regs_of(ops[1]); self.src = set(self.dst)
            elif '_co_' in mn:
                self.dst = regs_of(ops[0]) | regs_of(ops[1]); self.src = set().union(*[regs_of(o) for o in ops[2:]])
            else:
                self.dst = regs_of(ops[0]); self.src = set().union(*[regs_of(o) for o in ops[1:]]) if len(ops) > 1 else set()
                if mn.startswith('v_fmac') or mn.startswith('v_dot2c') or 'd16' in mn or mn.startswith('v_writelane'):
                    self.src |= self.dst
                if mn.startswith('v_cndmask') and len(ops) == 3: self.src.add(('vcc', 0))
            return
        if mn.startswith('s_'):
            self.kind = 'salu'
            if mn.startswith('s_cmp') or mn.startswith('s_cbranch') or mn in ('s_branch', 's_waitcnt', 's_barrier', 's_endpgm', 's_sleep', 's_setprio'):
                self.src = set().union(*[regs_of(o) for o in ops]) if ops else set()
                if mn.startswith('s_cbranch') or mn == 's_branch': self.kind = 'branch'
            else:
                self.dst = regs_of(ops[0]); self.src = set().union(*[regs_of(o) for o in ops[1:]]) if len(ops) > 1 else set()
                if 'saveexec' in mn: self.dst.add(('exec', 0))
                if mn.startswith('s_load'): self.kind = 'smem'
            return
        if mn.startswith('buffer_') or mn.startswith('global_'):
            self.kind = 'vmem'
            allr = set().union(*[regs_of(o) for o in ops])
            if ' lds' in (' ' + rest) and 'load' in mn:
                self.src = allr | {('m0', 0)}; self.kind = 'vmem_lds'
            elif 'load' in mn:
                self.dst = regs_of(ops[0]); self.src = set().union(*[regs_of(o) for o in ops[1:]])
                if 'd16' in mn: self.src |= self.dst
            else:
                self.src = allr
                if 'store' in mn and ('x4' in mn or 'x3' in mn): self.kind = 'vmem_wstore'
            return
        if mn.startswith('ds_'):
            self.kind = 'ds'
            if mn.startswith('ds_read') or mn.startswith('ds_bpermute') or mn.startswith('ds_swizzle') or 'rtn' in mn:
                self.dst = regs_of(ops[0]); self.src = set().union(*[regs_of(o) for o in ops[1:]])
                if 'd16' in mn: self.src |= self.dst
            else:
                self.src = set().union(*[regs_of(o) for o in ops])
            return
        raise ValueError('unknown instruction: ' + text)

def _vec(rs): return {r for r in rs if r[0] in 'va'}
def _sc(rs): return {r for r in rs if r[0] in ('s', 'vcc')}

def need(prod, cons):
    n = 0
    pk, ck = prod.kind, cons.kind
    if pk == 'valu':
        pv = _vec(prod.dst); ps = _sc(prod.dst)
        if pv:
            if ck == 'mfma' and pv & cons.src: n = max(n, 2)
            if ck == 'valu':
                if prod.mn.startswith(TRANS) and not cons.mn.startswith(TRANS) and pv & cons.src: n = max(n, 1)
                if prod.mn.startswith(TRANS) and cons.mn.startswith(TRANS) and pv & cons.src: n = max(n, 1)
                if ('_dpp' in cons.mn or 'quad_perm' in cons.text or 'row_' in cons.text) and pv & cons.src: n = max(n, 2)
                if cons.mn.startswith('v_permlane') and pv & cons.src: n = max(n, 2)
                if cons.mn.startswith(('v_readfirstlane', 'v_readlane')) and pv & cons.src: n = max(n, 1)
        if ps:
            if ck in ('vmem', 'vmem_lds', 'vmem_wstore') and ps & cons.src: n = max(n, 5)
            if ck in ('valu', 'mfma') and ps & cons.src:
                n = max(n, 4 if cons.mn.startswith(('v_readlane', 'v_writelane')) else 2)
            if ck in ('salu', 'branch', 'smem') and ps & cons.src: n = max(n, 1)
        if ('exec', 0) in prod.dst and ck in ('valu', 'mfma'): n = max(n, 5)
    if pk == 'salu':
        if ('m0', 0) in prod.dst and ck == 'vmem_lds': n = max(n, 1)
    if pk == 'mfma':
        p = prod.passes
        d = prod.dst
        big = {4: 8, 8: 12, 16: 20}[p]
        if ck == 'mfma':
            if d & cons.srcAB: n = max(n, big)
            if d & cons.srcC:
                if cons.srcC == d and cons.passes == p: pass
                else: n = max(n, big - 2)
            elif d & cons.dst: n = max(n, big)
        elif ck in ('valu', 'vmem', 'vmem_lds', 'vmem_wstore', 'ds'):
            if d & (cons.src | cons.dst): n = max(n, big)
        if ck == 'valu' and prod.srcC & cons.dst: n = max(n, {4: 3, 8: 7, 16: 15}[p])
        if ck in ('vmem', 'ds') and prod.srcC & cons.dst: n = max(n, {4: 3, 8: 7, 16: 15}[p])
    if pk == 'vmem_wstore':
        if ck == 'valu' and prod.src & cons.dst: n = max(n, 2)
        elif prod.src & cons.dst: n = max(n, 1)
    return n

class Asm:
    def __init__(self):
        self.L = []
    def __call__(self, s):
        for line in s.strip('\n').split('\n'):
            if line.strip(): self.L.append(line.strip())
    def label(self, name): self.L.append(name + ':')
    def pad(self):
        ins = [Ins(t) for t in self.L]
        W = 24
        def mknops(k):
            new = []
            while k > 0:
                m = min(k, 8); new.append(Ins('s_nop %d' % (m - 1))); k -= m
            return new
        def scan(hist, start, limit):
            h = list(hist)
            i = start; steps = 0
            while i < len(ins) and steps < limit:
                c = ins[i]
                if c.kind in ('label', 'none'):
                    i += 1; continue
                req = 0
                for (p, d) in h:
                    r = need(p, c)
                    if r > d: req = max(req, r - d)
                if req: return (i, req)
                adv = c.nop if c.kind == 'nop' else 1
                h = [(p, d + adv) for (p, d) in h if d + adv < W]
                if c.kind != 'nop': h.append((c, 0))
                if c.mn in ('s_branch', 's_endpgm'): break
                i += 1; steps += 1
            return None
        rounds = 0
        while True:
            rounds += 1
            assert rounds < 200
            restart = False
            hist = []
            i = 0
            while i < len(ins):
                c = ins[i]
                if c.kind in ('label', 'none'):
                    i += 1; continue
                req = 0
                for (p, d) in hist:
                    r = need(p, c)
                    if r > d: req = max(req, r - d)
                if req:
                    ins[i:i] = mknops(req)
                    continue
                adv = c.nop if c.kind == 'nop' else 1
                hist = [(p, d + adv) for (p, d) in hist if d + adv < W]
                if c.kind != 'nop': hist.append((c, 0))
                if c.kind == 'branch':
                    tgt = c.ops[0]
                    li = [j for j, x in enumerate(ins) if x.is_label and x.text.split(':')[0].strip() == tgt]
                    assert len(li) == 1, tgt
                    v = scan(hist, li[0], W)
                    if v:
                        j, k = v
                        ins[j:j] = mknops(k)
                        restart = True
                        break
                    if c.mn == 's_branch': hist = []
                if c.mn == 's_endpgm': hist = []
                i += 1
            if not restart: break
        self.L = [x.text for x in ins]
    def text(self):
        out = []
        for l in self.L:
            out.append(l if l.endswith(':') else '    ' + l)
        return '\n'.join(out) + '\n'
```

```python
class VM:
    def __init__(self, A): self.A = A; self.q = []
    def issue(self, tag, text): self.A(text); self.q.append(tag)
    def wait(self, tags, extra=''):
        last = -1
        for i, t in enumerate(self.q):
            if t in tags: last = i
        if last < 0:
            if extra: self.A(f's_waitcnt {extra}')
            return
        n = len(self.q) - 1 - last
        assert n <= 63
        self.A(f's_waitcnt vmcnt({n}) {extra}'.strip())
        self.q = self.q[last + 1:]
    def drain(self): self.q = []

def g_early(G):
    A = G.A
    A(f'''s_and_b32 s80, s2, 7
s_lshr_b32 s81, s2, 3
s_mul_i32 s82, s81, 37
s_lshr_b32 s82, s82, 8
s_mul_i32 s83, s82, 7
s_sub_u32 s83, s81, s83
s_lshr_b32 s84, s80, 1
s_lshl_b32 s85, s84, 2
s_add_u32 s85, s85, s82
s_and_b32 s84, s80, 1
s_mul_i32 s86, s84, 7
s_add_u32 s86, s86, s83
s_lshl_b32 s87, s80, 2
s_add_u32 s87, s87, s82
s_mov_b32 s88, s83''')
    G.mk_srd(G.R_A, G.S_WG, 0, 448 * 3584)
    G.mk_srd(G.R_B, G.S_WU, 0, 448 * 3584)
    A(f'''v_lshrrev_b32 v2, 4, v1
v_and_b32 v3, 15, v1
v_lshrrev_b32 v4, 1, v3
v_lshlrev_b32 v5, 1, v2
v_xor_b32 v4, v4, v5
v_and_b32 v3, 1, v3
v_lshl_add_u32 v4, v4, 1, v3
v_lshlrev_b32 v4, 4, v4
v_mul_u32_u24 v2, 3584, v2
v_add_u32 v30, v2, v4
s_lshl_b32 s80, s86, 8
s_mul_i32 s81, s3, {16*3584}
s_add_u32 s80, s80, s81
v_add_u32 v30, s80, v30
s_lshl_b32 s89, s3, 12''')
    return

def w_dma(G, vm, st, vo='v30'):
    A = G.A
    for i in range(8):
        mat = i >> 2
        lds = G.G_RING + (st % 3) * 32768 + mat * 16384 + (i & 3) * 1024
        A(f's_add_u32 m0, s89, {lds}\ns_mov_b32 s80, {(64*st + 4*(i&3))*3584}')
        vm.issue(('W', st), f'buffer_load_dwordx4 {vo}, {G.srd(G.R_A if mat == 0 else G.R_B)}, s80 offen lds')

def gemm1(G, vm):
    A = G.A
    A(f's_lshl_b32 s80, s85, 2\ns_add_u32 s80, s80, {G.D_LN*4}')
    G.dbg_wait('s80', 16, 'v2', 'v3')
    vm.drain()
    G.stamp(2)
    A(f'''v_mov_b32 v2, v30
s_lshl_b32 s80, s85, 7
s_lshl_b32 s81, s3, 5
s_add_u32 s80, s80, s81
v_and_b32 v12, 31, v1
v_add_u32 v12, s80, v12
v_mul_u32_u24 v12, 896, v12
v_lshrrev_b32 v13, 5, v1
v_lshl_add_u32 v3, v13, 4, v12''')
    XR = [80, 96, 112]
    def xloads(st):
        for s in range(4):
            r = XR[st % 3] + 4 * s
            vm.issue(('X', st), f'buffer_load_dwordx4 v[{r}:{r+3}], v3, {G.srd(G.R_XN)}, 0 offen offset:{32*(4*st+s)} sc1')
    for st in range(3): xloads(st)
    A('''v_lshrrev_b32 v8, 4, v1
v_and_b32 v9, 15, v1
v_lshrrev_b32 v12, 2, v9
v_and_b32 v9, 3, v9
v_lshrrev_b32 v13, 1, v8
v_and_b32 v8, 1, v8
v_lshl_add_u32 v13, v13, 3, v12
v_lshlrev_b32 v13, 8, v13
v_lshl_add_u32 v13, v9, 3, v13
v_lshl_add_u32 v13, v8, 5, v13''')
    for ft in range(4):
        A(f'v_xor_b32 v14, {ft}, v12\nv_lshl_add_u32 v{4+ft}, v14, 6, v13')
    for i in range(128): A(f'v_accvgpr_write_b32 a{i}, 0')
    WR = [16, 48]
    def wreads(st, s, buf):
        for mat in range(2):
            for ft in range(4):
                r = WR[buf] + (mat * 4 + ft) * 4
                off = mat * 16384 + s * 4096
                A(f'ds_read_b64_tr_b16 v[{r}:{r+1}], v{8+ft} offset:{off}\nds_read_b64_tr_b16 v[{r+2}:{r+3}], v{8+ft} offset:{off+1024}')
    def stage_addr(st):
        for ft in range(4):
            A(f'v_add_u32 v{8+ft}, {G.G_RING + (st%3)*32768}, v{4+ft}')
    nbar = [0]
    def gbar():
        nbar[0] += 1
        G.lds_sync(G.C_G, 4 * (G.cg_base + nbar[0]), 'v14', 'v15')
    vm.wait({('X', 0)})
    gbar()
    stage_addr(0)
    wreads(0, 0, 0)
    buf = 0
    for st in range(7):
        for s in range(4):
            A('s_waitcnt lgkmcnt(0)')
            if s < 3:
                wreads(st, s + 1, 1 - buf)
            elif st < 6:
                vm.wait({('X', st + 1), ('W', st + 1)})
                gbar()
                if st + 3 < 7: w_dma(G, vm, st + 3, 'v2')
                stage_addr(st + 1)
                wreads(st + 1, 0, 1 - buf)
            xr = XR[st % 3] + 4 * s
            for mat in range(2):
                for ft in range(4):
                    r = WR[buf] + (mat * 4 + ft) * 4
                    ac = (mat * 4 + ft) * 16
                    A(f'v_mfma_f32_32x32x16_bf16 a[{ac}:{ac+15}], v[{r}:{r+3}], v[{xr}:{xr+3}], a[{ac}:{ac+15}]')
            if s == 3 and st + 3 < 7: xloads(st + 3)
            buf = 1 - buf
    G.cg_base += nbar[0]
    G.stamp(3)
    A(f'''s_mul_i32 s80, s3, 8704
s_add_u32 s80, s80, {G.G_RING + 32768}
v_and_b32 v2, 31, v1
v_mul_u32_u24 v2, 272, v2
v_lshrrev_b32 v3, 5, v1
v_lshl_add_u32 v2, v3, 3, v2
v_add_u32 v2, s80, v2''')
    for ft in range(4):
        for q in range(4):
            for h in range(2):
                g0 = ft * 16 + 4 * q + 2 * h; u0 = 64 + g0
                t = 16 + 8 * h
                A(f'''v_accvgpr_read_b32 v{t}, a{g0}
v_accvgpr_read_b32 v{t+1}, a{g0+1}
v_accvgpr_read_b32 v{t+2}, a{u0}
v_accvgpr_read_b32 v{t+3}, a{u0+1}
v_cvt_pk_bf16_f32 v{t}, v{t}, v{t+1}
v_cvt_pk_bf16_f32 v{t+2}, v{t+2}, v{t+3}
v_lshlrev_b32 v{t+4}, 16, v{t}
v_and_b32 v{t+5}, 0xffff0000, v{t}
v_lshlrev_b32 v{t+6}, 16, v{t+2}
v_and_b32 v{t+7}, 0xffff0000, v{t+2}
v_mul_f32 v{t+4}, v{t+4}, v{t+6}
v_mul_f32 v{t+5}, v{t+5}, v{t+7}
v_cvt_pk_bf16_f32 v{40+h}, v{t+4}, v{t+5}''')
            A(f'ds_write_b64 v2, v[40:41] offset:{(32*ft + 8*q)*2}')
    G.mk_srd(G.R_C, G.S_WS, G.H_OFF, G.H_SZ)
    A(f'''v_lshrrev_b32 v3, 4, v1
v_and_b32 v4, 15, v1
v_mul_u32_u24 v5, 272, v3
v_lshl_add_u32 v5, v4, 4, v5
v_add_u32 v5, s80, v5
s_lshl_b32 s81, s85, 7
s_lshl_b32 s82, s3, 5
s_add_u32 s81, s81, s82
v_add_u32 v3, s81, v3
v_mul_u32_u24 v3, 3584, v3
v_lshl_add_u32 v3, v4, 4, v3
s_lshl_b32 s81, s86, 8
v_add_u32 v3, s81, v3
s_waitcnt lgkmcnt(0)''')
    for it in range(8):
        A(f'ds_read_b128 v[{16+4*it}:{19+4*it}], v5 offset:{it*4*272}')
    A('s_waitcnt lgkmcnt(0)')
    for it in range(8):
        A(f's_mov_b32 s81, {it*4*3584}\nbuffer_store_dwordx4 v[{16+4*it}:{19+4*it}], v3, {G.srd(G.R_C)}, s81 offen sc0 sc1')
    A('s_waitcnt vmcnt(0)')
    vm.drain()
    G.cg_base += 1
    G.lds_sync(G.C_G, 4 * G.cg_base, 'v14', 'v15')
    lab = G.uid('HSIG')
    A(f'''s_cmp_lg_u32 s3, 0
s_cbranch_scc1 {lab}
s_lshl_b32 s80, s85, 2
s_add_u32 s80, s80, {G.D_H*4}''')
    G.dbg_add('s80', 'v3', 'v4')
    A.label(lab)
    G.stamp(4)

def gemm2(G, vm):
    A = G.A
    G.mk_srd(G.R_A, G.S_WD, 0, 1792 * 896)
    A(f'''s_mul_i32 s89, s3, 24576
s_add_u32 s89, s89, {G.G_RING}''')
    A(f'''v_lshrrev_b32 v2, 3, v1
v_and_b32 v3, 7, v1
v_lshrrev_b32 v4, 1, v3
v_bfe_u32 v5, v1, 4, 1
v_lshlrev_b32 v5, 1, v5
v_xor_b32 v4, v4, v5
v_and_b32 v3, 1, v3
v_lshl_add_u32 v4, v4, 1, v3
v_lshlrev_b32 v4, 4, v4
v_mul_u32_u24 v2, 896, v2
v_add_u32 v12, v2, v4
s_mul_i32 s80, s3, {448*896}
s_lshl_b32 s81, s88, 7
s_add_u32 s80, s80, s81
v_add_u32 v12, s80, v12''')
    A(f'''v_lshrrev_b32 v2, 2, v1
v_and_b32 v3, 3, v1
v_bfe_u32 v4, v1, 4, 2
v_xor_b32 v3, v3, v4
v_mul_u32_u24 v2, 3584, v2
v_lshl_add_u32 v13, v3, 4, v2
s_mul_i32 s80, s87, {64*3584}
s_mul_i32 s81, s3, 896
s_add_u32 s80, s80, s81
v_add_u32 v13, s80, v13''')
    def wd_dma(st):
        for i in range(4):
            A(f's_add_u32 m0, s89, {(st%3)*8192 + 4096 + i*1024}\ns_mov_b32 s80, {(32*st + 8*i)*896}')
            vm.issue(('D', st), f'buffer_load_dwordx4 v12, {G.srd(G.R_A)}, s80 offen lds')
    def h_dma(st):
        for i in range(4):
            A(f's_add_u32 m0, s89, {(st%3)*8192 + i*1024}\ns_mov_b32 s80, {i*16*3584 + st*64}')
            vm.issue(('H', st), f'buffer_load_dwordx4 v13, {G.srd(G.R_C)}, s80 offen sc1 lds')
    for st in range(3): wd_dma(st)
    A(f's_lshr_b32 s80, s87, 1\ns_lshl_b32 s80, s80, 2\ns_add_u32 s80, s80, {G.D_H*4}')
    G.dbg_wait('s80', 14, 'v2', 'v3')
    vm.drain()
    G.stamp(5)
    for st in range(3): h_dma(st)
    A(f'''v_and_b32 v2, 31, v1
v_lshrrev_b32 v3, 5, v1
v_bfe_u32 v8, v1, 2, 2
v_xor_b32 v9, v3, v8
v_xor_b32 v10, 2, v9
v_lshlrev_b32 v2, 6, v2
v_lshl_add_u32 v4, v9, 4, v2
v_lshl_add_u32 v5, v10, 4, v2
v_add_u32 v4, s89, v4
v_add_u32 v5, s89, v5
v_lshrrev_b32 v2, 4, v1
v_and_b32 v3, 15, v1
v_lshrrev_b32 v8, 2, v3
v_and_b32 v3, 3, v3
v_lshrrev_b32 v9, 1, v2
v_and_b32 v2, 1, v2
v_lshl_add_u32 v9, v9, 3, v8
v_lshlrev_b32 v9, 7, v9
v_lshl_add_u32 v9, v3, 3, v9
v_lshl_add_u32 v9, v2, 5, v9
v_lshrrev_b32 v8, 1, v8
v_lshl_add_u32 v6, v8, 6, v9
v_xor_b32 v8, 1, v8
v_lshl_add_u32 v7, v8, 6, v9
v_add_u32 v6, s89, v6
v_add_u32 v7, s89, v7''')
    for i in range(64): A(f'v_accvgpr_write_b32 a{i}, 0')
    FR = [16, 48]
    def reads(st, buf):
        base = (st % 3) * 8192
        for sp in range(2):
            r = FR[buf] + sp * 16
            for dt in range(2):
                off = base + 4096 + sp * 2048
                A(f'ds_read_b64_tr_b16 v[{r+4*dt}:{r+4*dt+1}], v{6+dt} offset:{off}\nds_read_b64_tr_b16 v[{r+4*dt+2}:{r+4*dt+3}], v{6+dt} offset:{off+512}')
            for tt in range(2):
                A(f'ds_read_b128 v[{r+8+4*tt}:{r+11+4*tt}], v{4+sp} offset:{base + tt*2048}')
    vm.wait({('H', 0)})
    reads(0, 0)
    buf = 0
    for st in range(14):
        if st == 0:
            A('s_waitcnt lgkmcnt(0)')
            wd_dma(3); h_dma(3)
        if st < 13:
            vm.wait({('H', st + 1), ('D', st + 1)})
            reads(st + 1, 1 - buf)
        for sp in range(2):
            r = FR[buf] + sp * 16
            for dt in range(2):
                for tt in range(2):
                    ac = (dt * 2 + tt) * 16
                    A(f'v_mfma_f32_32x32x16_bf16 a[{ac}:{ac+15}], v[{r+4*dt}:{r+4*dt+3}], v[{r+8+4*tt}:{r+11+4*tt}], a[{ac}:{ac+15}]')
        if st < 13:
            A('s_waitcnt lgkmcnt(0)')
            if st + 4 < 14:
                wd_dma(st + 4); h_dma(st + 4)
        buf = 1 - buf
    G.stamp(6)
    A(f'''v_and_b32 v2, 31, v1
v_mul_u32_u24 v2, 272, v2
v_lshrrev_b32 v3, 5, v1
v_lshl_add_u32 v2, v3, 4, v2
v_add_u32 v2, s89, v2''')
    for dt in range(2):
        for tt in range(2):
            ac = (dt * 2 + tt) * 16
            for q in range(4):
                A(f'ds_write_b128 v2, a[{ac+4*q}:{ac+4*q+3}] offset:{tt*32*272 + (32*dt + 8*q)*4}')
    G.mk_srd(G.R_D, G.S_OUT, 0, G.XN_SZ)
    A(f'''v_lshrrev_b32 v3, 2, v0
v_and_b32 v4, 3, v0
s_lshl_b32 s80, s87, 6
v_add_u32 v5, s80, v3
v_mul_u32_u24 v5, 896, v5
v_lshl_add_u32 v5, v4, 5, v5
s_lshl_b32 s80, s88, 7
v_add_u32 v5, s80, v5
buffer_load_dwordx4 v[8:11], v5, {G.srd(G.R_X)}, 0 offen
buffer_load_dwordx4 v[12:15], v5, {G.srd(G.R_X)}, 0 offen offset:16''')
    A(f's_lshl_b32 s80, s88, 2\ns_add_u32 s80, s80, {G.D_A*4}')
    G.dbg_wait('s80', 32, 'v6', 'v7')
    G.stamp(7)
    G.mk_srd(G.R_B, G.S_WS, G.AT_OFF, G.XN_SZ)
    A(f'''s_lshl_b32 s80, s88, 6
s_lshl_b32 s81, s3, 4
s_add_u32 s80, s80, s81
v_lshrrev_b32 v6, 3, v1
v_add_u32 v6, s80, v6
v_lshlrev_b32 v6, 12, v6
v_and_b32 v7, 7, v1
v_lshl_add_u32 v6, v7, 4, v6
s_lshl_b32 s80, s87, 7
v_add_u32 v6, s80, v6
buffer_load_dwordx4 v[16:19], v6, {G.srd(G.R_B)}, 0 offen sc1
s_mov_b32 s80, {8*4096}
buffer_load_dwordx4 v[20:23], v6, {G.srd(G.R_B)}, s80 offen sc1
v_lshlrev_b32 v7, 4, v1
v_add_u32 v7, s89, v7
s_waitcnt vmcnt(0)
ds_write_b128 v7, v[16:19] offset:17408
ds_write_b128 v7, v[20:23] offset:18432''')
    G.cg_base += 1
    G.lds_sync(G.C_G, 4 * G.cg_base, 'v6', 'v7')
    A(f'''v_mul_u32_u24 v6, 272, v3
v_lshl_add_u32 v6, v4, 6, v6
v_add_u32 v6, {G.G_RING}, v6
v_mul_u32_u24 v7, 24576, v4
v_lshl_add_u32 v7, v3, 1, v7
v_add_u32 v7, {G.G_RING + 17408}, v7
v_add_u32 v24, 49152, v6''')
    for w in range(4):
        for c in range(4):
            r = 32 + w * 16 + c * 4
            A(f'ds_read_b128 v[{r}:{r+3}], {"v6" if w < 2 else "v24"} offset:{(w&1)*24576 + c*16}')
    for e in range(16):
        A(f'ds_read_u16 v{96+e}, v7 offset:{e*128}')
    A('s_waitcnt lgkmcnt(0)')
    for e in range(16):
        A(f'''v_add_f32 v{32+e}, v{32+e}, v{48+e}
v_add_f32 v{64+e}, v{64+e}, v{80+e}''')
    for e in range(16):
        A(f'v_add_f32 v{32+e}, v{32+e}, v{64+e}')
    for p in range(8):
        e0, e1 = 2 * p, 2 * p + 1
        xr = 8 + p
        A(f'''v_cvt_pk_bf16_f32 v{32+e0}, v{32+e0}, v{32+e1}
v_lshlrev_b32 v{48+e0}, 16, v{xr}
v_and_b32 v{48+e1}, 0xffff0000, v{xr}
v_lshlrev_b32 v{96+e0}, 16, v{96+e0}
v_lshlrev_b32 v{96+e1}, 16, v{96+e1}
v_add_f32 v{48+e0}, v{48+e0}, v{96+e0}
v_add_f32 v{48+e1}, v{48+e1}, v{96+e1}
v_cvt_pk_bf16_f32 v{48+e0}, v{48+e0}, v{48+e1}
v_lshlrev_b32 v{64+e0}, 16, v{48+e0}
v_and_b32 v{64+e1}, 0xffff0000, v{48+e0}
v_and_b32 v{32+e1}, 0xffff0000, v{32+e0}
v_lshlrev_b32 v{32+e0}, 16, v{32+e0}
v_add_f32 v{64+e0}, v{64+e0}, v{32+e0}
v_add_f32 v{64+e1}, v{64+e1}, v{32+e1}
v_cvt_pk_bf16_f32 v{16+p}, v{64+e0}, v{64+e1}''')
    A(f'''buffer_store_dwordx4 v[16:19], v5, {G.srd(G.R_D)}, 0 offen
buffer_store_dwordx4 v[20:23], v5, {G.srd(G.R_D)}, 0 offen offset:16''')
    G.stamp(8)
```

```python
import sys, math, struct
sys.path.insert(0, 'dev')
from asmkit import Asm

KN = 'parallel_sum__ssm_conv_s4__glu_gated_bilinear__prompt_kernel'
NWG = 256
NROLE = 224

XN_OFF, XNT_OFF, H_OFF, AT_OFF = 0, 2 << 20, 4 << 20, 12 << 20
XN_SZ = 2048 * 448 * 2
H_SZ = 2048 * 1792 * 2
G_RING = 0
S_PAR = 98304
S_KQ = S_PAR + 10240
S_KC = S_KQ + 16384
S_KREV = S_PAR + 35328
S_CNT = S_KREV + 4 * 4224
LNB = S_CNT + 64
LDS_SZ = LNB + 8192
S_RED = S_PAR
S_U = S_PAR + 16384
C_G, C_S, C_P0, C_P1 = S_CNT, S_CNT + 4, S_CNT + 8, S_CNT + 12
cg_base = 0
D_LN, D_H, D_A = 0, 16, 32

def f2u(x): return struct.unpack('<I', struct.pack('<f', x))[0]
LOG2E = f2u(1.4426950408889634)
INV2PI_HI = struct.unpack('<f', struct.pack('<f', 1 / (2 * math.pi)))[0]
INV2PI_LO = f2u(1 / (2 * math.pi) - INV2PI_HI)
INV2PI_HI = f2u(INV2PI_HI)

A = Asm()
_uid = [0]
def uid(p):
    _uid[0] += 1
    return f'{p}_{_uid[0]}'

S_UU, S_ARE, S_AIM, S_BRE, S_BIM, S_CRE, S_CIM, S_LDT = 16, 18, 20, 22, 24, 26, 28, 30
S_DSK, S_BX, S_WG, S_WU, S_WD, S_OUT, S_DBG, S_WS = 32, 34, 36, 38, 40, 42, 44, 46
R_X, R_XN, R_XNT, R_DBG, R_A, R_B, R_C, R_D = 48, 52, 56, 60, 64, 68, 72, 76
def srd(r): return f's[{r}:{r+3}]'

def mk_srd(r, base, off, size):
    if off == 0:
        A(f's_mov_b32 s{r}, s{base}\ns_mov_b32 s{r+1}, s{base+1}')
    else:
        A(f's_add_u32 s{r}, s{base}, {off}\ns_addc_u32 s{r+1}, s{base+1}, 0')
    A(f's_mov_b32 s{r+2}, {size}\ns_mov_b32 s{r+3}, 0x00020000')

def wave_sum(v, t, s0=80):
    A(f'''v_add_f32_dpp {t}, {v}, {v} quad_perm:[1,0,3,2] row_mask:0xf bank_mask:0xf
v_add_f32_dpp {v}, {t}, {t} quad_perm:[2,3,0,1] row_mask:0xf bank_mask:0xf
v_add_f32_dpp {t}, {v}, {v} row_half_mirror row_mask:0xf bank_mask:0xf
v_add_f32_dpp {v}, {t}, {t} row_mirror row_mask:0xf bank_mask:0xf
v_readlane_b32 s{s0}, {v}, 0
v_readlane_b32 s{s0+1}, {v}, 16
v_readlane_b32 s{s0+2}, {v}, 32
v_readlane_b32 s{s0+3}, {v}, 48
v_mov_b32 {v}, s{s0}
v_add_f32 {v}, s{s0+1}, {v}
v_add_f32 {v}, s{s0+2}, {v}
v_add_f32 {v}, s{s0+3}, {v}''')

def lds_sync(cnt_addr, target, vt, vone, st=84):
    lp = uid('SYNC')
    A(f'''s_waitcnt lgkmcnt(0)
v_mov_b32 {vt}, {cnt_addr}
v_mov_b32 {vone}, 1
s_mov_b64 exec, 1
ds_add_u32 {vt}, {vone}
s_mov_b64 exec, -1''')
    A.label(lp)
    A(f'''ds_read_b32 {vone}, {vt}
s_waitcnt lgkmcnt(0)
v_readfirstlane_b32 s{st}, {vone}
s_cmp_ge_u32 s{st}, {target}
s_cbranch_scc0 {lp}''')

def dbg_add(idx_sgpr_or_imm, vt, vone):
    if isinstance(idx_sgpr_or_imm, int):
        A(f'v_mov_b32 {vt}, {idx_sgpr_or_imm*4}')
    else:
        A(f'v_mov_b32 {vt}, {idx_sgpr_or_imm}')
    A(f'''v_mov_b32 {vone}, 1
s_mov_b64 exec, 1
buffer_atomic_add {vone}, {vt}, {srd(R_DBG)}, 0 offen sc1
s_mov_b64 exec, -1''')

def dbg_wait(off_sgpr, target, vt, vv, st=84):
    lp = uid('POLL')
    A(f'v_mov_b32 {vt}, {off_sgpr}')
    A.label(lp)
    A(f'''buffer_load_dword {vv}, {vt}, {srd(R_DBG)}, 0 offen sc0 sc1
s_waitcnt vmcnt(0)
v_readfirstlane_b32 s{st}, {vv}
s_cmp_ge_u32 s{st}, {target}
s_cbranch_scc1 {lp}_ok
s_sleep 2
s_branch {lp}''')
    A.label(lp + '_ok')

PROF = False
PROF_OFF = 32 << 20
def stamp(i):
    if not PROF: return
    A(f'''s_memtime s[94:95]
s_lshl_b32 s96, s2, 3
s_add_u32 s96, s96, s3
s_lshl_b32 s96, s96, 8
s_add_u32 s96, s96, {PROF_OFF + 8*i}
v_mov_b32 v25, s96
s_waitcnt lgkmcnt(0)
v_mov_b32 v26, s94
v_mov_b32 v27, s95
global_store_dwordx2 v25, v[26:27], s[{S_WS}:{S_WS+1}]''')

def prologue():
    A(f'''s_cmp_ge_u32 s2, {NWG}
s_cbranch_scc1 L_END
s_load_dwordx16 s[16:31], s[0:1], 0
s_load_dwordx16 s[32:47], s[0:1], 64
v_lshrrev_b32 v2, 6, v0
v_and_b32 v1, 63, v0
v_readfirstlane_b32 s3, v2
s_waitcnt lgkmcnt(0)''')
    mk_srd(R_X, S_UU, 0, XN_SZ)
    mk_srd(R_XN, S_WS, XN_OFF, XN_SZ)
    mk_srd(R_XNT, S_WS, XNT_OFF, XN_SZ)
    mk_srd(R_DBG, S_DBG, 0, 256)
    A(f'''v_mov_b32 v2, {S_CNT}
v_mov_b32 v4, 0
v_mov_b32 v5, 0
v_mov_b32 v6, 0
v_mov_b32 v7, 0
ds_write_b128 v2, v[4:7]''')

def ln_stage():
    global cg_base
    A(f'''s_lshl_b32 s80, s2, 3
s_lshl_b32 s81, s3, 1
s_add_u32 s80, s80, s81
s_mul_i32 s81, s80, 896
v_lshlrev_b32 v2, 4, v1
v_add_u32 v2, s81, v2
v_mov_b32 v3, 0x7ffffff0
v_cmp_gt_u32 vcc, 56, v1
v_cndmask_b32 v2, v3, v2, vcc
buffer_load_dwordx4 v[4:7], v2, {srd(R_X)}, 0 offen
buffer_load_dwordx4 v[36:39], v2, {srd(R_X)}, 0 offen offset:896
s_lshl_b32 s81, s3, 2
s_add_u32 s81, s81, {LNB}
v_lshlrev_b32 v3, 7, v1
v_add_u32 v3, s81, v3
s_waitcnt vmcnt(0)''')
    inv448 = f2u(1.0 / 448.0)
    A(f'v_mov_b32 v24, {inv448}\nv_mov_b32 v25, 0x43e00000')
    for row in range(2):
        S = 4 if row == 0 else 36
        for i in range(4):
            A(f'v_lshlrev_b32 v{8+2*i}, 16, v{S+i}\nv_and_b32 v{9+2*i}, 0xffff0000, v{S+i}')
        A('''v_add_f32 v16, v8, v9
v_add_f32 v17, v10, v11
v_add_f32 v18, v12, v13
v_add_f32 v19, v14, v15
v_add_f32 v16, v16, v17
v_add_f32 v18, v18, v19
v_add_f32 v16, v16, v18''')
        wave_sum('v16', 'v17')
        A(f'''v_mul_f32 v17, v16, v24
v_fma_f32 v18, -v17, v25, v16
v_fma_f32 v17, v18, v24, v17''')
        A('v_mov_b32 v18, 0')
        for i in range(8):
            A(f'v_sub_f32 v19, v{8+i}, v17\nv_fmac_f32 v18, v19, v19')
        A('v_mov_b32 v19, 0\nv_cndmask_b32 v18, v19, v18, vcc')
        wave_sum('v18', 'v19')
        A(f'''v_mul_f32 v19, v18, v24
v_fma_f32 v20, -v19, v25, v18
v_fma_f32 v19, v20, v24, v19
v_cvt_pk_bf16_f32 v17, v17, v19
v_and_b32 v19, 0xffff0000, v17
v_lshlrev_b32 v17, 16, v17
v_add_f32 v19, {f2u(1e-5)}, v19
v_cvt_pk_bf16_f32 v19, v19, v19
v_lshlrev_b32 v19, 16, v19
v_sqrt_f32 v19, v19
v_cvt_pk_bf16_f32 v19, v19, v19
v_lshlrev_b32 v19, 16, v19
v_rcp_f32 v19, v19''')
        O = 20 if row == 0 else 40
        for i in range(4):
            A(f'''v_sub_f32 v{8+2*i}, v{8+2*i}, v17
v_sub_f32 v{9+2*i}, v{9+2*i}, v17
v_cvt_pk_bf16_f32 v{S+i}, v{8+2*i}, v{9+2*i}
v_lshlrev_b32 v{8+2*i}, 16, v{S+i}
v_and_b32 v{9+2*i}, 0xffff0000, v{S+i}
v_mul_f32 v{8+2*i}, v{8+2*i}, v19
v_mul_f32 v{9+2*i}, v{9+2*i}, v19
v_cvt_pk_bf16_f32 v{O+i}, v{8+2*i}, v{9+2*i}''')
        A(f'buffer_store_dwordx4 v[{O}:{O+3}], v2, {srd(R_XN)}, 0 offen offset:{896*row} sc0 sc1')
        for i in range(4):
            A(f'ds_write_b16 v3, v{O+i} offset:{32*i+2*row}\nds_write_b16_d16_hi v3, v{O+i} offset:{32*i+16+2*row}')
    cg_base += 1
    lds_sync(C_G, 4 * cg_base, 'v4', 'v5')
    A(f'''v_lshlrev_b32 v3, 4, v0
v_add_u32 v3, {LNB}, v3
ds_read_b128 v[4:7], v3
ds_read_b128 v[8:11], v3 offset:4096
v_lshlrev_b32 v3, 12, v0
s_lshl_b32 s81, s2, 4
v_add_u32 v3, s81, v3
s_mov_b32 s81, {256*4096}
s_waitcnt lgkmcnt(0)
buffer_store_dwordx4 v[4:7], v3, {srd(R_XNT)}, 0 offen sc0 sc1
buffer_store_dwordx4 v[8:11], v3, {srd(R_XNT)}, s81 offen sc0 sc1
s_waitcnt vmcnt(0)''')
    cg_base += 1
    lds_sync(C_G, 4 * cg_base, 'v4', 'v5')
    lab = uid('LNSIG')
    A(f'''s_cmp_lg_u32 s3, 0
s_cbranch_scc1 {lab}
s_lshr_b32 s81, s2, 4
s_lshl_b32 s81, s81, 2''')
    dbg_add('s81', 'v3', 'v4')
    A.label(lab)

ROWS_L = list(range(8)) + [256, 258, 260, 262, 512, 516, 768, 772, 1024, 1280, 1536, 1792, 2048]

def s_param_loads():
    A(f'''s_sub_u32 s87, s3, 4
s_lshr_b32 s85, s87, 1
s_lshl_b32 s84, s2, 1
s_add_u32 s85, s85, s84
s_and_b32 s86, s87, 1
s_lshl_b32 s84, s85, 9
s_lshl_b32 s88, s86, 8
s_add_u32 s84, s84, s88
v_lshlrev_b32 v98, 1, v1
v_add_u32 v98, s84, v98
s_lshl_b32 s84, s85, 1
v_mov_b32 v99, s84''')
    for k, b in enumerate((S_ARE, S_AIM, S_BRE, S_BIM, S_CRE, S_CIM)):
        A(f'global_load_ushort v{100+2*k}, v98, s[{b}:{b+1}]\nglobal_load_ushort v{101+2*k}, v98, s[{b}:{b+1}] offset:128')
    A(f'global_load_ushort v112, v99, s[{S_LDT}:{S_LDT+1}]\nglobal_load_ushort v113, v99, s[{S_DSK}:{S_DSK+1}]')

def interleave(streams):
    out = []
    n = max(len(s) for s in streams)
    for i in range(n):
        for s in streams:
            if i < len(s): out.append(s[i])
    return out

def kgen():
    A('s_waitcnt vmcnt(0)')
    for k in range(14):
        A(f'v_lshlrev_b32 v{100+k}, 16, v{100+k}')
    A(f'''v_mov_b32 v2, {LOG2E}
v_mul_f32 v112, v112, v2
v_exp_f32 v112, v112
v_cvt_pk_bf16_f32 v112, v112, v112
v_lshlrev_b32 v112, 16, v112
s_mul_i32 s84, s87, 2560
s_add_u32 s84, s84, {S_PAR}
v_lshlrev_b32 v3, 2, v1
v_add_u32 v3, s84, v3
v_mov_b32 v4, {INV2PI_HI}
v_mov_b32 v5, {INV2PI_LO}''')
    for h in range(2):
        are, aim, bre, bim, cre, cim = [f'v{100+2*k+h}' for k in range(6)]
        A(f'''v_mul_f32 {are}, v112, {are}
v_mul_f32 {aim}, v112, {aim}
v_mul_f32 {bre}, v112, {bre}
v_mul_f32 {bim}, v112, {bim}
v_mul_f32 v6, {are}, v2
v_mul_f32 v7, {aim}, v4
v_fma_f32 v8, {aim}, v4, -v7
v_fma_f32 v8, {aim}, v5, v8
v_and_b32 v9, 0xffffff00, v7
v_sub_f32 v7, v7, v9
v_add_f32 v7, v7, v8
v_mul_f32 v10, {cre}, {bre}
v_fma_f32 v10, -{cim}, {bim}, v10
v_mul_f32 v11, {cre}, {bim}
v_fma_f32 v11, {cim}, {bre}, v11
ds_write_b32 v3, v6 offset:{256*h}
ds_write_b32 v3, v9 offset:{512+256*h}
ds_write_b32 v3, v7 offset:{1024+256*h}
ds_write_b32 v3, v10 offset:{1536+256*h}
ds_write_b32 v3, v11 offset:{2048+256*h}''')
    A('v_and_b32 v6, 31, v1\nv_mov_b32 v4, 0')
    for i, l in enumerate(ROWS_L):
        if l == 0: continue
        A(f'v_cmp_eq_u32 vcc, {i}, v6\nv_mov_b32 v7, {f2u(float(l))}\nv_cndmask_b32 v4, v4, v7, vcc')
    A(f'''v_lshlrev_b32 v5, 3, v6
v_cvt_f32_u32 v5, v5
v_lshrrev_b32 v3, 5, v1
v_lshlrev_b32 v3, 4, v3
v_add_u32 v3, s84, v3''')
    ACC = 112
    A('v_mov_b32 v99, v113')
    for i in range(16): A(f'v_mov_b32 v{ACC+i}, 0')
    P = [8, 28]
    def preads(pb):
        for k in range(5):
            A(f'ds_read_b128 v[{pb+4*k}:{pb+4*k+3}], v3 offset:{512*k}')
    A('s_waitcnt lgkmcnt(0)')
    preads(P[0])
    A('s_mov_b32 s88, 0')
    loop = uid('KG')
    A.label(loop)
    for half in range(2):
        pb = P[half]; pn = P[1 - half]
        A('v_add_u32 v3, 32, v3')
        A('s_waitcnt lgkmcnt(0)')
        preads(pn)
        streams = []
        for e in range(4):
            for xy in range(2):
                t = 64 + (e * 2 + xy) * 4
                a, b, c, d = f'v{t}', f'v{t+1}', f'v{t+2}', f'v{t+3}'
                l = 'v4' if xy == 0 else 'v5'
                ar2, rh, rl, cr, ci = [f'v{pb+4*k+e}' for k in range(5)]
                hi = f'v{48+e}' if xy == 0 else f'v{56+e}'
                lo = f'v{52+e}' if xy == 0 else f'v{60+e}'
                s = [f'v_mul_f32 {b}, {rh}, {l}',
                     f'v_mul_f32 {a}, {ar2}, {l}',
                     f'v_fract_f32 {b}, {b}',
                     f'v_exp_f32 {a}, {a}',
                     f'v_fma_f32 {b}, {rl}, {l}, {b}',
                     f'v_cos_f32 {c}, {b}',
                     f'v_sin_f32 {d}, {b}']
                if xy == 0:
                    s += [f'v_mul_f32 {b}, {a}, {cr}',
                          f'v_mul_f32 {a}, {a}, {ci}',
                          f'v_mul_f32 {hi}, {b}, {c}',
                          f'v_mul_f32 {lo}, {b}, {d}',
                          f'v_fma_f32 {b}, -{a}, {d}, {hi}',
                          f'v_fma_f32 {a}, -{a}, {c}, -{lo}']
                    re_, im_ = b, a
                else:
                    s += [f'v_mul_f32 {b}, {a}, {c}',
                          f'v_mul_f32 {a}, {a}, {d}']
                    re_, im_ = b, a
                s += [f'v_cvt_pk_bf16_f32 {hi}, {re_}, {im_}',
                      f'v_lshlrev_b32 {c}, 16, {hi}',
                      f'v_and_b32 {d}, 0xffff0000, {hi}',
                      f'v_sub_f32 {re_}, {re_}, {c}',
                      f'v_sub_f32 {im_}, {im_}, {d}',
                      f'v_cvt_pk_bf16_f32 {lo}, {re_}, {im_}']
                streams.append(s)
        for x in interleave(streams): A(x)
        acc = f'v[{ACC}:{ACC+15}]'
        A(f'''v_mfma_f32_32x32x16_bf16 {acc}, v[48:51], v[56:59], {acc}
v_mfma_f32_32x32x16_bf16 {acc}, v[48:51], v[60:63], {acc}
v_mfma_f32_32x32x16_bf16 {acc}, v[52:55], v[56:59], {acc}''')
    A(f'''s_add_u32 s88, s88, 1
s_cmp_lt_u32 s88, 8
s_cbranch_scc1 {loop}''')
    stamp(2)
    A(f'''s_lshl_b32 s84, s87, 12
s_add_u32 s84, s84, {S_KQ}
v_lshrrev_b32 v3, 5, v1
v_lshlrev_b32 v3, 9, v3
v_and_b32 v6, 31, v1
v_lshl_add_u32 v3, v6, 2, v3
v_add_u32 v6, s84, v3''')
    for v in range(16):
        A(f'ds_write_b32 v6, v{ACC+v} offset:{(8*(v>>2)+(v&3))*128}')
    A(f'''s_lshr_b32 s89, s87, 1
s_lshl_b32 s89, s89, 2
s_add_u32 s89, s89, {C_P0}''')
    lds_sync('s89', 2, 'v7', 'v8')
    A(f'''s_xor_b32 s84, s87, 1
s_lshl_b32 s84, s84, 12
s_add_u32 s84, s84, {S_KQ}
s_lshl_b32 s90, s86, 11
s_add_u32 s84, s84, s90
v_add_u32 v6, s84, v3
s_lshr_b32 s84, s87, 1
s_lshl_b32 s84, s84, 12
s_add_u32 s84, s84, {S_KC}''')
    for v in range(8):
        A(f'ds_read_b32 v{8+v}, v6 offset:{(8*(v>>2)+(v&3))*128}')
    A('s_cmp_eq_u32 s86, 0\ns_cselect_b64 vcc, -1, 0')
    for v in range(8):
        A(f'v_cndmask_b32 v{16+v}, v{ACC+8+v}, v{ACC+v}, vcc')
    A('v_and_b32 v2, 31, v1\nv_lshlrev_b32 v2, 3, v2\nv_lshrrev_b32 v4, 5, v1\nv_cmp_eq_u32 s[92:93], 0, v4')
    BIG = 4096
    def lrow(r): return ROWS_L[r] if r < 21 else BIG
    for v in range(8):
        c = [[lrow(16 * nh + 8 * (v >> 2) + 4 * hf + (v & 3)) for hf in range(2)] for nh in range(2)]
        t = 32 + 4 * v
        A(f'''v_mov_b32 v{t}, {c[0][0]}
v_mov_b32 v{t+1}, {c[1][0]}
v_cndmask_b32 v{t}, v{t+1}, v{t}, vcc
v_mov_b32 v{t+1}, {c[0][1]}
v_mov_b32 v{t+2}, {c[1][1]}
v_cndmask_b32 v{t+1}, v{t+2}, v{t+1}, vcc
v_cndmask_b32 v{t}, v{t+1}, v{t}, s[92:93]
v_add_u32 v{t}, v{t}, v2
v_cvt_f32_u32 v{t+1}, v{t}
v_lshrrev_b32 v{t+1}, 16, v{t+1}
v_subrev_u32 v{t+1}, 17024, v{t+1}''')
    for v in range(8):
        t = 32 + 4 * v
        A(f'''v_cmp_gt_u32 vcc, 256, v{t}
v_cndmask_b32 v{t+1}, v{t+1}, v{t}, vcc
v_cmp_lt_u32 vcc, 2048, v{t}
v_mov_b32 v{t+2}, 1000
v_cndmask_b32 v{t+1}, v{t+1}, v{t+2}, vcc
v_lshlrev_b32 v{t+1}, 2, v{t+1}
v_add_u32 v{t+1}, s84, v{t+1}''')
    A('s_waitcnt lgkmcnt(0)')
    for v in range(8):
        A(f'''v_add_f32 v{8+v}, v{8+v}, v{16+v}
v_cvt_pk_bf16_f32 v{16+v}, v{8+v}, v{8+v}
v_lshlrev_b32 v24, 16, v{16+v}
v_sub_f32 v{8+v}, v{8+v}, v24
v_cvt_pk_bf16_f32 v{8+v}, v{8+v}, v{8+v}
v_and_b32 v{16+v}, 0xffff, v{16+v}
v_lshl_or_b32 v{8+v}, v{8+v}, 16, v{16+v}
ds_write_b32 v{33+4*v}, v{8+v}''')
    lds_sync('s89', 4, 'v7', 'v8')
    stamp(3)
    A(f'''s_lshr_b32 s84, s87, 1
s_mul_i32 s90, s84, 8448
s_add_u32 s90, s90, {S_KREV}
s_lshl_b32 s84, s84, 12
s_add_u32 s84, s84, {S_KC}
s_mul_i32 s91, s86, 1048
v_add_u32 v2, s91, v1
v_lshlrev_b32 v3, 1, v2
v_add_u32 v3, s90, v3''')
    for it in range(17):
        t = 8 + 4 * it
        A(f'''v_sub_u32 v{t}, {2063 - 64*it}, v2
v_cvt_f32_i32 v{t+1}, v{t}
v_cvt_pk_bf16_f32 v{t+1}, v{t+1}, v{t+1}
v_and_b32 v{t+1}, 0xffff, v{t+1}
v_subrev_u32 v{t+1}, 17024, v{t+1}
v_cmp_gt_u32 vcc, 256, v{t}
v_cndmask_b32 v{t+1}, v{t+1}, v{t}, vcc
v_lshlrev_b32 v{t+1}, 2, v{t+1}
v_and_b32 v{t+1}, 0xffc, v{t+1}
v_add_u32 v{t+1}, s84, v{t+1}
ds_read_b32 v{t+2}, v{t+1}''')
    A('v_mov_b32 v4, 0\ns_waitcnt lgkmcnt(0)')
    for it in range(17):
        t = 8 + 4 * it
        A(f'''v_cmp_gt_u32 vcc, 2048, v{t}
v_cndmask_b32 v{t+2}, v4, v{t+2}, vcc''')
        if it == 16:
            A(f'v_cmp_gt_u32 vcc, {2096 - 1024}, v2\ns_and_saveexec_b64 s[92:93], vcc')
        A(f'''ds_write_b16 v3, v{t+2} offset:{128*it}
ds_write_b16_d16_hi v3, v{t+2} offset:{128*it + 4224}''')
        if it == 16:
            A('s_mov_b64 exec, s[92:93]')
    lds_sync('s89', 6, 'v7', 'v8')

def conv():
    lp = uid('LNW')
    A(f'v_lshlrev_b32 v2, 2, v1\nv_and_b32 v2, 63, v2')
    A.label(lp)
    A(f'''buffer_load_dword v3, v2, {srd(R_DBG)}, 0 offen sc0 sc1
s_waitcnt vmcnt(0)
v_cmp_le_u32 vcc, 16, v3
s_cmp_eq_u64 vcc, -1
s_cbranch_scc1 {lp}_ok
s_sleep 2
s_branch {lp}''')
    A.label(lp + '_ok')
    stamp(5)
    A(f'''s_lshl_b32 s84, s85, 12
s_add_u32 s84, s84, {XNT_OFF}''')
    mk_srd(R_A, S_WS, 's84', 4096)
    A(f'''s_lshl_b32 s84, s85, 12
s_add_u32 s84, s84, {AT_OFF}''')
    mk_srd(R_B, S_WS, 's84', 4096)
    A(f'''s_mul_i32 s91, s87, 4672
s_add_u32 s91, s91, {S_U}
v_lshlrev_b32 v8, 4, v1''')
    for i in range(4):
        A(f's_add_u32 m0, s91, {512 + 1024*i}\ns_mov_b32 s84, {1024*i}\nbuffer_load_dwordx4 v8, {srd(R_A)}, s84 offen sc1 lds')
    A(f'''v_mov_b32 v12, 0
v_mov_b32 v13, 0
v_mov_b32 v14, 0
v_mov_b32 v15, 0
v_lshlrev_b32 v9, 3, v1
v_add_u32 v9, s91, v9
ds_write_b64 v9, v[12:13]
v_and_b32 v10, 15, v1
v_lshlrev_b32 v10, 2, v10
v_add_u32 v10, s91, v10
ds_write_b32 v10, v12 offset:4608''')
    A(f'''s_lshr_b32 s84, s87, 1
s_mul_i32 s84, s84, 8448
s_mul_i32 s90, s86, 4224
s_add_u32 s84, s84, s90
s_add_u32 s84, s84, {S_KREV + 4126 - 3584}
v_and_b32 v4, 15, v1
v_lshrrev_b32 v5, 4, v1
v_lshlrev_b32 v6, 1, v4
v_lshlrev_b32 v7, 4, v5
v_sub_u32 v2, v7, v6
v_add_u32 v2, s84, v2
v_lshl_add_u32 v3, v4, 5, v7
v_add_u32 v3, s91, v3''')
    for i in range(32): A(f'v_accvgpr_write_b32 a{i}, 0')
    SETS = [('v', 32), ('a', 32)]
    def fr(st, kind, idx):
        p, b = SETS[st]
        r0 = b + kind * 32 + idx * 4
        return f'{p}[{r0}:{r0+3}]'
    def loads(r, st):
        A(f'v_subrev_u32 v8, {64*r}, v2')
        for a in range(8):
            A(f'ds_read_b128 {fr(st,0,a)}, v8 offset:{512*(7-a)}')
        for b in range(8):
            A(f'ds_read_b128 {fr(st,1,b)}, v3 offset:{512 + 512*b - 64*r}')
    def acc(q): return f'a[{4*q}:{4*q+3}]'
    A(f'''v_subrev_u32 v8, 512, v2
ds_read_b128 v[12:15], v8
s_waitcnt vmcnt(0) lgkmcnt(0)
ds_read_b128 v[16:19], v3''')
    loads(0, 0)
    for r in range(8):
        st = r & 1
        A('s_waitcnt lgkmcnt(0)')
        if r < 7:
            loads(r + 1, 1 - st)
        for a in range(8):
            for b in range(8 - a):
                A(f'v_mfma_f32_16x16x32_bf16 {acc(a+b)}, {fr(st,0,a)}, {fr(st,1,b)}, {acc(a+b)}')
        if r == 0:
            for a in range(1, 8):
                A(f'v_mfma_f32_16x16x32_bf16 {acc(a-1)}, {fr(st,0,a)}, v[16:19], {acc(a-1)}')
            A(f'v_mfma_f32_16x16x32_bf16 {acc(7)}, v[12:15], v[16:19], {acc(7)}')
    stamp(6)
    A(f'''s_lshl_b32 s84, s87, 12
s_add_u32 s84, s84, {S_RED}
v_lshlrev_b32 v8, 4, v1
v_add_u32 v9, s84, v8
s_xor_b32 s84, s87, 1
s_lshl_b32 s84, s84, 12
s_add_u32 s84, s84, {S_RED}
v_add_u32 v10, s84, v8
s_cmp_eq_u32 s86, 0
s_cselect_b64 vcc, -1, 0''')
    for i in range(16):
        A(f'''v_accvgpr_read_b32 v{64+i}, a{i}
v_accvgpr_read_b32 v{80+i}, a{16+i}''')
    for i in range(16):
        A(f'''v_cndmask_b32 v{32+i}, v{64+i}, v{80+i}, vcc
v_cndmask_b32 v{48+i}, v{80+i}, v{64+i}, vcc''')
    for q in range(4):
        A(f'ds_write_b128 v9, v[{32+4*q}:{35+4*q}] offset:{1024*q}')
    A(f'''v_lshlrev_b32 v11, 3, v5
v_lshl_add_u32 v11, v4, 5, v11
s_lshl_b32 s84, s86, 11
v_add_u32 v11, s84, v11''')
    for q in range(4):
        A(f'buffer_load_dwordx2 v[{64+2*q}:{65+2*q}], v11, {srd(R_A)}, 0 offen offset:{512*q} sc1')
    lds_sync('s89', 8, 'v12', 'v13')
    for q in range(4):
        A(f'ds_read_b128 v[{32+4*q}:{35+4*q}], v10 offset:{1024*q}')
    A('s_waitcnt vmcnt(0) lgkmcnt(0)')
    for q in range(4):
        for h in range(2):
            y0, y1 = f'v{48+4*q+2*h}', f'v{49+4*q+2*h}'
            p0, p1 = f'v{32+4*q+2*h}', f'v{33+4*q+2*h}'
            u = f'v{64+2*q+h}'
            A(f'''v_add_f32 {y0}, {y0}, {p0}
v_add_f32 {y1}, {y1}, {p1}
v_cvt_pk_bf16_f32 {y0}, {y0}, {y1}
v_lshlrev_b32 {p0}, 16, {u}
v_and_b32 {p1}, 0xffff0000, {u}
v_mul_f32 {p0}, {p0}, v99
v_mul_f32 {p1}, {p1}, v99
v_cvt_pk_bf16_f32 {p0}, {p0}, {p1}
v_lshlrev_b32 {y1}, 16, {y0}
v_and_b32 {y0}, 0xffff0000, {y0}
v_lshlrev_b32 {p1}, 16, {p0}
v_and_b32 {p0}, 0xffff0000, {p0}
v_add_f32 {y1}, {y1}, {p1}
v_add_f32 {y0}, {y0}, {p0}
v_cvt_pk_bf16_f32 {u}, {y1}, {y0}''')
        A(f'buffer_store_dwordx2 v[{64+2*q}:{65+2*q}], v11, {srd(R_B)}, 0 offen offset:{512*q} sc0 sc1')
    A('s_waitcnt vmcnt(0)')
    lds_sync(C_S, 4, 'v12', 'v13')
    lab = uid('ASIG')
    A(f'''s_cmp_lg_u32 s87, 0
s_cbranch_scc1 {lab}
s_lshr_b32 s84, s85, 6
s_lshl_b32 s84, s84, 2
s_add_u32 s84, s84, {D_A*4}''')
    dbg_add('s84', 'v3', 'v4')
    A.label(lab)

def build(with_g=True):
    import gen_g
    G = sys.modules[__name__]
    prologue()
    A('s_waitcnt lgkmcnt(0)\ns_barrier')
    A('s_cmp_lt_u32 s3, 4\ns_cbranch_scc1 L_GPATH')
    A(f's_cmp_ge_u32 s2, {NROLE}\ns_cbranch_scc1 L_END')
    stamp(0)
    s_param_loads()
    kgen()
    stamp(4)
    conv()
    stamp(7)
    A('s_branch L_END')
    A.label('L_GPATH')
    stamp(0)
    vm = gen_g.VM(A)
    lab = uid('NOG')
    A(f's_cmp_ge_u32 s2, {NROLE}\ns_cbranch_scc1 {lab}')
    if with_g:
        gen_g.g_early(G)
        for st in range(3): gen_g.w_dma(G, vm, st)
    A.label(lab)
    ln_stage()
    stamp(1)
    A(f's_cmp_ge_u32 s2, {NROLE}\ns_cbranch_scc1 L_END')
    if with_g:
        gen_g.gemm1(G, vm)
        gen_g.gemm2(G, vm)
    A.label('L_END')
    A('s_endpgm')
    A.pad()
    hdr = f'''; fused LN + S4 conv + bilinear GLU kernel (generated by dev/gen.py)
; @launch grid=({NWG},1,1) block=(512,1,1) lds={LDS_SZ}
.amdgcn_target "amdgcn-amd-amdhsa--gfx950"
.text
.globl {KN}
.p2align 8
.type {KN},@function
{KN}:
'''
    ftr = f'''.section .rodata,"a"
.p2align 6
.amdhsa_kernel {KN}
  .amdhsa_next_free_vgpr 256
  .amdhsa_next_free_sgpr 102
  .amdhsa_accum_offset 128
  .amdhsa_group_segment_fixed_size 0
  .amdhsa_kernarg_size 128
  .amdhsa_user_sgpr_count 2
  .amdhsa_user_sgpr_kernarg_segment_ptr 1
  .amdhsa_system_sgpr_workgroup_id_x 1
.end_amdhsa_kernel
'''
    return hdr + A.text() + ftr

if __name__ == '__main__':
    out = sys.argv[1]
    with_g = 'nog' not in sys.argv[2:]
    PROF = 'prof' in sys.argv[2:]
    open(out, 'w').write(build(with_g))
```

```python
class VM:
    def __init__(self, A): self.A = A; self.q = []
    def issue(self, tag, text): self.A(text); self.q.append(tag)
    def wait(self, tags, extra=''):
        last = -1
        for i, t in enumerate(self.q):
            if t in tags: last = i
        if last < 0:
            if extra: self.A(f's_waitcnt {extra}')
            return
        n = len(self.q) - 1 - last
        assert n <= 63
        self.A(f's_waitcnt vmcnt({n}) {extra}'.strip())
        self.q = self.q[last + 1:]
    def drain(self): self.q = []

def weave(A, main, fill, gaps=None):
    n = gaps or len(main)
    k = len(fill)
    done = 0
    for i, m in enumerate(main):
        A(m)
        want = k if i >= n - 1 else (k * (i + 1) + n - 1) // n
        while done < want:
            f = fill[done]; done += 1
            if callable(f): f()
            else: A(f)
    while done < k:
        f = fill[done]; done += 1
        if callable(f): f()
        else: A(f)

XS = 65536

def g_early(G):
    A = G.A
    A(f'''s_and_b32 s80, s2, 7
s_lshr_b32 s81, s2, 3
s_mul_i32 s82, s81, 37
s_lshr_b32 s82, s82, 8
s_mul_i32 s83, s82, 7
s_sub_u32 s83, s81, s83
s_lshr_b32 s84, s80, 1
s_lshl_b32 s85, s84, 2
s_add_u32 s85, s85, s82
s_and_b32 s84, s80, 1
s_mul_i32 s86, s84, 7
s_add_u32 s86, s86, s83
s_lshl_b32 s87, s80, 2
s_add_u32 s87, s87, s82
s_mov_b32 s88, s83''')
    G.mk_srd(G.R_A, G.S_WG, 0, 448 * 3584)
    G.mk_srd(G.R_B, G.S_WU, 0, 448 * 3584)
    A(f'''v_lshrrev_b32 v26, 4, v1
v_and_b32 v27, 15, v1
v_lshrrev_b32 v28, 1, v27
v_lshlrev_b32 v29, 1, v26
v_xor_b32 v28, v28, v29
v_and_b32 v27, 1, v27
v_lshl_add_u32 v28, v28, 1, v27
v_lshlrev_b32 v28, 4, v28
v_mul_u32_u24 v26, 3584, v26
v_add_u32 v30, v26, v28
s_lshl_b32 s80, s86, 8
s_mul_i32 s81, s3, {16*3584}
s_add_u32 s80, s80, s81
v_add_u32 v30, s80, v30
s_lshl_b32 s89, s3, 12''')

def w_dma_list(G, vm, st, vo):
    A = G.A
    out = []
    for i in range(8):
        mat = i >> 2
        lds = G.G_RING + (st % 2) * 32768 + mat * 16384 + (i & 3) * 1024
        def f(i=i, mat=mat, lds=lds):
            A(f's_add_u32 m0, s89, {lds}\ns_mov_b32 s80, {(64*st + 4*(i&3))*3584}')
            vm.issue(('W', st), f'buffer_load_dwordx4 {vo}, {G.srd(G.R_A if mat == 0 else G.R_B)}, s80 offen lds')
        out.append(f)
    return out

def w_dma(G, vm, st, vo='v30'):
    for f in w_dma_list(G, vm, st, vo): f()

def gemm1(G, vm):
    A = G.A
    def setup():
        A(f'''s_cmp_ge_u32 s85, 14
s_cselect_b32 s80, 14, 0
s_sub_u32 s80, s85, s80
s_lshl_b32 s80, s80, 4
v_add_u32 v3, s80, v1
v_mov_b32 v6, 1000
v_cmp_gt_u32 vcc, 16, v1
v_cndmask_b32 v3, v6, v3, vcc''')
    G.flag_wait([setup], 'v3', 6, 'v2')
    G.stamp(2)
    A(f'''v_mov_b32 v2, v30
s_lshl_b32 s80, s85, 7
s_lshl_b32 s81, s3, 5
s_add_u32 s80, s80, s81
v_lshrrev_b32 v12, 3, v1
v_add_u32 v13, s80, v12
v_mul_u32_u24 v13, 896, v13
v_lshrrev_b32 v12, 4, v1
v_and_b32 v14, 7, v1
v_xor_b32 v12, v12, v14
v_lshl_add_u32 v3, v12, 4, v13
v_xor_b32 v12, 4, v12
v_lshl_add_u32 v80, v12, 4, v13''')
    def x_dma_list(st):
        out = []
        for i in range(4):
            def f(i=i):
                A(f's_add_u32 m0, s89, {G.G_RING + XS + (st%2)*16384 + i*1024}\ns_mov_b32 s80, {8*i*896 + 128*st}')
                vm.issue(('X', st), f'buffer_load_dwordx4 {"v3" if i % 2 == 0 else "v80"}, {G.srd(G.R_XN)}, s80 offen sc1 lds')
            out.append(f)
        return out
    if G.PF2:
        A(f'''v_and_b32 v12, 31, v1
v_add_u32 v12, s80, v12
v_mul_u32_u24 v12, 896, v12
s_lshl_b32 s81, s88, 7
v_add_u32 v12, s81, v12''')
        vm.issue('pf', f'buffer_load_dword v100, v12, {G.srd(G.R_XN)}, 0 offen sc1')
    for st in range(2):
        for f in x_dma_list(st): f()
    A('''v_lshrrev_b32 v8, 4, v1
v_and_b32 v9, 15, v1
v_lshrrev_b32 v12, 2, v9
v_and_b32 v9, 3, v9
v_lshrrev_b32 v13, 1, v8
v_and_b32 v8, 1, v8
v_lshl_add_u32 v13, v13, 3, v12
v_lshlrev_b32 v13, 8, v13
v_lshl_add_u32 v13, v9, 3, v13
v_lshl_add_u32 v13, v8, 5, v13''')
    for ft in range(4):
        A(f'v_xor_b32 v14, {ft}, v12\nv_lshl_add_u32 v{4+ft}, v14, 6, v13')
    A(f'''v_and_b32 v12, 31, v1
v_lshrrev_b32 v13, 5, v1
v_bfe_u32 v14, v1, 1, 3
v_xor_b32 v13, v13, v14
v_lshlrev_b32 v12, 7, v12
s_add_u32 s80, s89, {G.G_RING + XS}
v_add_u32 v12, s80, v12''')
    for s in range(4):
        A(f'v_xor_b32 v14, {2*s}, v13\nv_lshl_add_u32 v{81+s}, v14, 4, v12')
    for i in range(128): A(f'v_accvgpr_write_b32 a{i}, 0')
    WR = [16, 48]
    XR = [88, 92]
    def reads(st, s, buf):
        out = [f'ds_read_b128 v[{XR[buf]}:{XR[buf]+3}], v{81+s} offset:{(st%2)*16384}']
        for mat in range(2):
            for ft in range(4):
                r = WR[buf] + (mat * 4 + ft) * 4
                off = mat * 16384 + s * 4096
                out.append(f'ds_read_b64_tr_b16 v[{r}:{r+1}], v{8+ft} offset:{off}')
                out.append(f'ds_read_b64_tr_b16 v[{r+2}:{r+3}], v{8+ft} offset:{off+1024}')
        return out
    def stage_addr(st):
        for ft in range(4):
            A(f'v_add_u32 v{8+ft}, {G.G_RING + (st%2)*32768}, v{4+ft}')
    nbar = [0]
    def arrive():
        nbar[0] += 1
        A(f'''v_mov_b32 v14, {G.C_G}
v_mov_b32 v15, 1
s_mov_b64 exec, 1
ds_add_u32 v14, v15
s_mov_b64 exec, -1''')
    def poll():
        lp = G.uid('GB')
        A.label(lp)
        A(f'''ds_read_b32 v15, v14
s_waitcnt lgkmcnt(0)
v_readfirstlane_b32 s84, v15
s_cmp_ge_u32 s84, {4 * (G.cg_base + nbar[0])}
s_cbranch_scc0 {lp}''')
    vm.wait({('X', 0), ('W', 0)})
    arrive(); poll()
    stage_addr(0)
    for x in reads(0, 0, 0): A(x)
    buf = 0
    for st in range(7):
        for s in range(4):
            A('s_waitcnt lgkmcnt(0)')
            xr = XR[buf]
            mf = []
            for mat in range(2):
                for ft in range(4):
                    r = WR[buf] + (mat * 4 + ft) * 4
                    ac = (mat * 4 + ft) * 16
                    mf.append(f'v_mfma_f32_32x32x16_bf16 a[{ac}:{ac+15}], v[{r}:{r+3}], v[{xr}:{xr+3}], a[{ac}:{ac+15}]')
            if s < 3:
                fill = reads(st, s + 1, 1 - buf)
                if s == 0 and st >= 1 and st + 1 < 7:
                    fill = fill + pend
                weave(A, mf, fill, gaps=7)
            elif st < 6:
                G.stamp2(10 + 3 * st)
                vm.wait({('X', st + 1), ('W', st + 1)})
                G.stamp2(11 + 3 * st)
                arrive()
                for x in mf[:3]: A(x)
                poll()
                G.stamp2(12 + 3 * st)
                stage_addr(st + 1)
                fill = reads(st + 1, 0, 1 - buf)
                pend = []
                if st + 2 < 7:
                    d = w_dma_list(G, vm, st + 2, 'v2') + x_dma_list(st + 2)
                    fill = fill + d[:5]; pend = d[5:]
                weave(A, mf[3:], fill, gaps=5)
            else:
                for x in mf: A(x)
            buf = 1 - buf
    G.cg_base += nbar[0]
    G.stamp(3)
    A(f'''s_mul_i32 s80, s3, 8704
s_add_u32 s80, s80, {G.G_RING + 32768}
s_cmp_eq_u32 s3, 3
s_cselect_b32 s80, {G.G_RING + XS + 16384}, s80
v_and_b32 v2, 31, v1
v_mul_u32_u24 v2, 272, v2
v_lshrrev_b32 v3, 5, v1
v_lshl_add_u32 v2, v3, 3, v2
v_add_u32 v2, s80, v2''')
    for ft in range(4):
        for q in range(4):
            for h in range(2):
                g0 = ft * 16 + 4 * q + 2 * h; u0 = 64 + g0
                t = 16 + 8 * h
                A(f'''v_accvgpr_read_b32 v{t}, a{g0}
v_accvgpr_read_b32 v{t+1}, a{g0+1}
v_accvgpr_read_b32 v{t+2}, a{u0}
v_accvgpr_read_b32 v{t+3}, a{u0+1}
v_cvt_pk_bf16_f32 v{t}, v{t}, v{t+1}
v_cvt_pk_bf16_f32 v{t+2}, v{t+2}, v{t+3}
v_lshlrev_b32 v{t+4}, 16, v{t}
v_and_b32 v{t+5}, 0xffff0000, v{t}
v_lshlrev_b32 v{t+6}, 16, v{t+2}
v_and_b32 v{t+7}, 0xffff0000, v{t+2}
v_mul_f32 v{t+4}, v{t+4}, v{t+6}
v_mul_f32 v{t+5}, v{t+5}, v{t+7}
v_cvt_pk_bf16_f32 v{40+h}, v{t+4}, v{t+5}''')
            A(f'ds_write_b64 v2, v[40:41] offset:{(32*ft + 8*q)*2}')
    G.mk_srd(G.R_C, G.S_WS, G.H_OFF, G.H_SZ)
    A(f'''v_lshrrev_b32 v3, 4, v1
v_and_b32 v4, 15, v1
v_mul_u32_u24 v5, 272, v3
v_lshl_add_u32 v5, v4, 4, v5
v_add_u32 v5, s80, v5
s_lshl_b32 s81, s85, 7
s_lshl_b32 s82, s3, 5
s_add_u32 s81, s81, s82
v_add_u32 v3, s81, v3
v_mul_u32_u24 v3, 3584, v3
v_lshl_add_u32 v3, v4, 4, v3
s_lshl_b32 s81, s86, 8
v_add_u32 v3, s81, v3
s_waitcnt lgkmcnt(0)''')
    for it in range(8):
        A(f'ds_read_b128 v[{16+4*it}:{19+4*it}], v5 offset:{it*4*272}')
    A('s_waitcnt lgkmcnt(0)')
    for it in range(8):
        A(f's_mov_b32 s81, {it*4*3584}\nbuffer_store_dwordx4 v[{16+4*it}:{19+4*it}], v3, {G.srd(G.R_C)}, s81 offen sc1')
    A('s_waitcnt vmcnt(0)')
    vm.drain()
    G.cg_base += 1
    G.lds_sync(G.C_G, 4 * G.cg_base, 'v14', 'v15')
    lab = G.uid('HSIG')
    A(f's_cmp_lg_u32 s3, 0\ns_cbranch_scc1 {lab}')
    G.flag_set(1, 'v3', 4)
    A.label(lab)
    G.stamp(4)

def gemm2(G, vm):
    A = G.A
    G.mk_srd(G.R_A, G.S_WD, 0, 1792 * 896)
    A(f'''s_mul_i32 s89, s3, 24576
s_add_u32 s89, s89, {G.G_RING}''')
    A(f'''v_lshrrev_b32 v2, 3, v1
v_and_b32 v3, 7, v1
v_lshrrev_b32 v4, 1, v3
v_bfe_u32 v5, v1, 4, 1
v_lshlrev_b32 v5, 1, v5
v_xor_b32 v4, v4, v5
v_and_b32 v3, 1, v3
v_lshl_add_u32 v4, v4, 1, v3
v_lshlrev_b32 v4, 4, v4
v_mul_u32_u24 v2, 896, v2
v_add_u32 v12, v2, v4
s_mul_i32 s80, s3, {448*896}
s_lshl_b32 s81, s88, 7
s_add_u32 s80, s80, s81
v_add_u32 v12, s80, v12''')
    A(f'''v_lshrrev_b32 v2, 3, v1
v_mul_u32_u24 v2, 3584, v2
s_mul_i32 s80, s87, {64*3584}
s_mul_i32 s81, s3, 896
s_add_u32 s80, s80, s81
v_add_u32 v2, s80, v2
v_lshrrev_b32 v3, 4, v1
v_and_b32 v4, 7, v1
v_xor_b32 v3, v3, v4
v_lshl_add_u32 v13, v3, 4, v2
v_xor_b32 v3, 4, v3
v_lshl_add_u32 v80, v3, 4, v2''')
    def wd_list(st):
        out = []
        for i in range(4):
            def f(i=i):
                A(f's_add_u32 m0, s89, {16384 + (st%2)*4096 + i*1024}\ns_mov_b32 s80, {(32*st + 8*i)*896}')
                vm.issue(('D', st), f'buffer_load_dwordx4 v12, {G.srd(G.R_A)}, s80 offen lds')
            out.append(f)
        return out
    def h_list(j):
        out = []
        for i in range(8):
            def f(i=i):
                A(f's_add_u32 m0, s89, {(j%2)*8192 + i*1024}\ns_mov_b32 s80, {i*8*3584 + j*128}')
                vm.issue(('H', j), f'buffer_load_dwordx4 {"v13" if i % 2 == 0 else "v80"}, {G.srd(G.R_C)}, s80 offen sc1 lds')
            out.append(f)
        return out
    lab = G.uid('WDE')
    A(f's_cmp_eq_u32 s3, 0\ns_cbranch_scc1 {lab}')
    for st in range(2):
        for f in wd_list(st): f()
    A.label(lab)
    vm.drain()
    def setup():
        A(f'''s_lshr_b32 s80, s87, 1
s_and_b32 s81, s80, 3
s_lshr_b32 s80, s80, 2
s_mul_i32 s81, s81, 56
s_lshl_b32 s80, s80, 1
s_add_u32 s80, s80, s81
s_add_u32 s80, s80, 224
v_lshrrev_b32 v3, 1, v1
v_lshlrev_b32 v3, 3, v3
v_and_b32 v6, 1, v1
v_add_u32 v3, v3, v6
v_add_u32 v3, s80, v3
v_mov_b32 v6, 1000
v_cmp_gt_u32 vcc, 14, v1
v_cndmask_b32 v3, v6, v3, vcc''')
    G.flag_wait([setup], 'v3', 6, 'v2')
    G.stamp(5)
    lab = G.uid('WDL')
    A(f's_cmp_lg_u32 s3, 0\ns_cbranch_scc1 {lab}')
    for st in range(2):
        for f in wd_list(st): f()
    A.label(lab)
    vm.drain()
    if G.PF2:
        A(f'''s_lshl_b32 s80, s87, 6
v_add_u32 v2, s80, v1
v_mul_u32_u24 v2, 3584, v2
s_mul_i32 s80, s3, 896
s_lshl_b32 s81, s88, 7
s_add_u32 s80, s80, s81
v_add_u32 v2, s80, v2''')
        vm.issue('pf', f'buffer_load_dword v100, v2, {G.srd(G.R_C)}, 0 offen sc1')
    for j in range(2):
        for f in h_list(j): f()
    A(f'''v_and_b32 v2, 31, v1
v_lshrrev_b32 v3, 5, v1
v_bfe_u32 v8, v1, 1, 3
v_xor_b32 v3, v3, v8
v_lshlrev_b32 v2, 7, v2
v_add_u32 v2, s89, v2''')
    for c in range(4):
        A(f'v_xor_b32 v8, {2*c}, v3\nv_lshl_add_u32 v{81+c}, v8, 4, v2')
    A(f'''v_lshrrev_b32 v2, 4, v1
v_and_b32 v3, 15, v1
v_lshrrev_b32 v8, 2, v3
v_and_b32 v3, 3, v3
v_lshrrev_b32 v9, 1, v2
v_and_b32 v2, 1, v2
v_lshl_add_u32 v9, v9, 3, v8
v_lshlrev_b32 v9, 7, v9
v_lshl_add_u32 v9, v3, 3, v9
v_lshl_add_u32 v9, v2, 5, v9
v_lshrrev_b32 v8, 1, v8
v_lshl_add_u32 v6, v8, 6, v9
v_xor_b32 v8, 1, v8
v_lshl_add_u32 v7, v8, 6, v9
v_add_u32 v6, s89, v6
v_add_u32 v7, s89, v7''')
    for i in range(64): A(f'v_accvgpr_write_b32 a{i}, 0')
    FR = [16, 48]
    def reads(st, buf):
        out = []
        for sp in range(2):
            r = FR[buf] + sp * 16
            for dt in range(2):
                off = 16384 + (st % 2) * 4096 + sp * 2048
                out.append(f'ds_read_b64_tr_b16 v[{r+4*dt}:{r+4*dt+1}], v{6+dt} offset:{off}')
                out.append(f'ds_read_b64_tr_b16 v[{r+4*dt+2}:{r+4*dt+3}], v{6+dt} offset:{off+512}')
            for tt in range(2):
                out.append(f'ds_read_b128 v[{r+8+4*tt}:{r+11+4*tt}], v{81 + 2*(st&1) + sp} offset:{((st>>1)%2)*8192 + tt*4096}')
        return out
    vm.wait({('H', 0)})
    for x in reads(0, 0): A(x)
    buf = 0
    for st in range(14):
        A('s_waitcnt lgkmcnt(0)')
        fill = []
        if st < 13:
            if st in (5, 6): G.stamp2(28 + 2 * (st - 5))
            vm.wait({('H', (st + 1) >> 1), ('D', st + 1)})
            if st in (5,): G.stamp2(29)
            fill += reads(st + 1, 1 - buf)
        if st + 2 < 14:
            fill += wd_list(st + 2)
        if st & 1 and (st >> 1) + 2 < 7:
            fill += h_list((st >> 1) + 2)
        mf = []
        for sp in range(2):
            r = FR[buf] + sp * 16
            for dt in range(2):
                for tt in range(2):
                    ac = (dt * 2 + tt) * 16
                    mf.append(f'v_mfma_f32_32x32x16_bf16 a[{ac}:{ac+15}], v[{r+4*dt}:{r+4*dt+3}], v[{r+8+4*tt}:{r+11+4*tt}], a[{ac}:{ac+15}]')
        weave(A, mf, fill)
        buf = 1 - buf
    G.stamp(6)
    A(f'''v_and_b32 v2, 31, v1
v_mul_u32_u24 v2, 272, v2
v_lshrrev_b32 v3, 5, v1
v_lshl_add_u32 v2, v3, 4, v2
v_add_u32 v2, s89, v2''')
    for dt in range(2):
        for tt in range(2):
            ac = (dt * 2 + tt) * 16
            for q in range(4):
                A(f'ds_write_b128 v2, a[{ac+4*q}:{ac+4*q+3}] offset:{tt*32*272 + (32*dt + 8*q)*4}')
    G.mk_srd(G.R_D, G.S_OUT, 0, G.XN_SZ)
    A(f'''v_lshrrev_b32 v3, 2, v0
v_and_b32 v4, 3, v0
s_lshl_b32 s80, s87, 6
v_add_u32 v5, s80, v3
v_mul_u32_u24 v5, 896, v5
v_lshl_add_u32 v5, v4, 5, v5
s_lshl_b32 s80, s88, 7
v_add_u32 v5, s80, v5
buffer_load_dwordx4 v[8:11], v5, {G.srd(G.R_X)}, 0 offen
buffer_load_dwordx4 v[12:15], v5, {G.srd(G.R_X)}, 0 offen offset:16''')
    def setup():
        A(f'''s_lshl_b32 s80, s88, 5
s_add_u32 s80, s80, 448
v_add_u32 v24, s80, v1
v_mov_b32 v25, 1000
v_cmp_gt_u32 vcc, 32, v1
v_cndmask_b32 v24, v25, v24, vcc''')
    G.flag_wait([setup], 'v24', 6, 'v26')
    G.stamp(7)
    G.mk_srd(G.R_B, G.S_WS, G.AT_OFF, G.XN_SZ)
    A(f'''s_lshl_b32 s80, s88, 6
s_lshl_b32 s81, s3, 4
s_add_u32 s80, s80, s81
v_lshrrev_b32 v6, 3, v1
v_add_u32 v6, s80, v6
v_lshlrev_b32 v6, 12, v6
v_and_b32 v7, 7, v1
v_lshl_add_u32 v6, v7, 4, v6
s_lshl_b32 s80, s87, 7
v_add_u32 v6, s80, v6
buffer_load_dwordx4 v[16:19], v6, {G.srd(G.R_B)}, 0 offen sc1
s_mov_b32 s80, {8*4096}
buffer_load_dwordx4 v[20:23], v6, {G.srd(G.R_B)}, s80 offen sc1
v_lshlrev_b32 v7, 4, v1
v_add_u32 v7, s89, v7
s_waitcnt vmcnt(0)
ds_write_b128 v7, v[16:19] offset:17408
ds_write_b128 v7, v[20:23] offset:18432''')
    G.cg_base += 1
    G.lds_sync(G.C_G, 4 * G.cg_base, 'v6', 'v7')
    A(f'''v_mul_u32_u24 v6, 272, v3
v_lshl_add_u32 v6, v4, 6, v6
v_add_u32 v6, {G.G_RING}, v6
v_mul_u32_u24 v7, 24576, v4
v_lshl_add_u32 v7, v3, 1, v7
v_add_u32 v7, {G.G_RING + 17408}, v7
v_add_u32 v24, 49152, v6''')
    for w in range(4):
        for c in range(4):
            r = 32 + w * 16 + c * 4
            A(f'ds_read_b128 v[{r}:{r+3}], {"v6" if w < 2 else "v24"} offset:{(w&1)*24576 + c*16}')
    for e in range(16):
        A(f'ds_read_u16 v{96+e}, v7 offset:{e*128}')
    A('s_waitcnt lgkmcnt(0)')
    for e in range(16):
        A(f'''v_add_f32 v{32+e}, v{32+e}, v{48+e}
v_add_f32 v{64+e}, v{64+e}, v{80+e}''')
    for e in range(16):
        A(f'v_add_f32 v{32+e}, v{32+e}, v{64+e}')
    for p in range(8):
        e0, e1 = 2 * p, 2 * p + 1
        xr = 8 + p
        A(f'''v_cvt_pk_bf16_f32 v{32+e0}, v{32+e0}, v{32+e1}
v_lshlrev_b32 v{48+e0}, 16, v{xr}
v_and_b32 v{48+e1}, 0xffff0000, v{xr}
v_lshlrev_b32 v{96+e0}, 16, v{96+e0}
v_lshlrev_b32 v{96+e1}, 16, v{96+e1}
v_add_f32 v{48+e0}, v{48+e0}, v{96+e0}
v_add_f32 v{48+e1}, v{48+e1}, v{96+e1}
v_cvt_pk_bf16_f32 v{48+e0}, v{48+e0}, v{48+e1}
v_lshlrev_b32 v{64+e0}, 16, v{48+e0}
v_and_b32 v{64+e1}, 0xffff0000, v{48+e0}
v_and_b32 v{32+e1}, 0xffff0000, v{32+e0}
v_lshlrev_b32 v{32+e0}, 16, v{32+e0}
v_add_f32 v{64+e0}, v{64+e0}, v{32+e0}
v_add_f32 v{64+e1}, v{64+e1}, v{32+e1}
v_cvt_pk_bf16_f32 v{16+p}, v{64+e0}, v{64+e1}''')
    A(f'''buffer_store_dwordx4 v[16:19], v5, {G.srd(G.R_D)}, 0 offen
buffer_store_dwordx4 v[20:23], v5, {G.srd(G.R_D)}, 0 offen offset:16''')
    G.stamp(8)
```

```python
import sys, math, struct
sys.path.insert(0, 'dev')
from asmkit import Asm

KN = 'parallel_sum__ssm_conv_s4__glu_gated_bilinear__prompt_kernel'
NWG = 224
NROLE = 224

XN_OFF, XNT_OFF, H_OFF, AT_OFF, FLG_OFF = 0, 2 << 20, 4 << 20, 12 << 20, 16 << 20
FLG_SZ = 3 * 224 * 128
XN_SZ = 2048 * 448 * 2
H_SZ = 2048 * 1792 * 2
G_RING = 0
S_PAR = 98304
S_KQ = S_PAR + 10240
S_KC = S_KQ + 16384
S_KREV = S_PAR + 35328
KRSZ = 4640
S_CNT = S_KREV + 4 * KRSZ
LNB = G_RING + 65536
LDS_SZ = S_CNT + 64
S_RED = S_PAR
S_U = S_PAR + 16384
C_G, C_S, C_P0, C_P1 = S_CNT, S_CNT + 4, S_CNT + 8, S_CNT + 12
cg_base = 0
D_A = 56

def f2u(x): return struct.unpack('<I', struct.pack('<f', x))[0]
LOG2E = f2u(1.4426950408889634)
INV2PI_HI = struct.unpack('<f', struct.pack('<f', 1 / (2 * math.pi)))[0]
INV2PI_LO = f2u(1 / (2 * math.pi) - INV2PI_HI)
INV2PI_HI = f2u(INV2PI_HI)

A = Asm()
_uid = [0]
def uid(p):
    _uid[0] += 1
    return f'{p}_{_uid[0]}'

S_UU, S_ARE, S_AIM, S_BRE, S_BIM, S_CRE, S_CIM, S_LDT = 16, 18, 20, 22, 24, 26, 28, 30
S_DSK, S_BX, S_WG, S_WU, S_WD, S_OUT, S_DBG, S_WS = 32, 34, 36, 38, 40, 42, 44, 46
R_X, R_XN, R_XNT, R_DBG, R_A, R_B, R_C, R_D = 48, 52, 56, 60, 64, 68, 72, 76
def srd(r): return f's[{r}:{r+3}]'

def mk_srd(r, base, off, size):
    if off == 0:
        A(f's_mov_b32 s{r}, s{base}\ns_mov_b32 s{r+1}, s{base+1}')
    else:
        A(f's_add_u32 s{r}, s{base}, {off}\ns_addc_u32 s{r+1}, s{base+1}, 0')
    A(f's_mov_b32 s{r+2}, {size}\ns_mov_b32 s{r+3}, 0x00020000')

def wave_sum(v, t, s0=80):
    A(f'''v_add_f32_dpp {t}, {v}, {v} quad_perm:[1,0,3,2] row_mask:0xf bank_mask:0xf
v_add_f32_dpp {v}, {t}, {t} quad_perm:[2,3,0,1] row_mask:0xf bank_mask:0xf
v_add_f32_dpp {t}, {v}, {v} row_half_mirror row_mask:0xf bank_mask:0xf
v_add_f32_dpp {v}, {t}, {t} row_mirror row_mask:0xf bank_mask:0xf
v_readlane_b32 s{s0}, {v}, 0
v_readlane_b32 s{s0+1}, {v}, 16
v_readlane_b32 s{s0+2}, {v}, 32
v_readlane_b32 s{s0+3}, {v}, 48
v_mov_b32 {v}, s{s0}
v_add_f32 {v}, s{s0+1}, {v}
v_add_f32 {v}, s{s0+2}, {v}
v_add_f32 {v}, s{s0+3}, {v}''')

def lds_sync(cnt_addr, target, vt, vone, st=84):
    lp = uid('SYNC')
    A(f'''s_waitcnt lgkmcnt(0)
v_mov_b32 {vt}, {cnt_addr}
v_mov_b32 {vone}, 1
s_mov_b64 exec, 1
ds_add_u32 {vt}, {vone}
s_mov_b64 exec, -1''')
    A.label(lp)
    A(f'''ds_read_b32 {vone}, {vt}
s_waitcnt lgkmcnt(0)
v_readfirstlane_b32 s{st}, {vone}
s_cmp_ge_u32 s{st}, {target}
s_cbranch_scc0 {lp}''')

def dbg_add(idx_sgpr_or_imm, vt, vone):
    if isinstance(idx_sgpr_or_imm, int):
        A(f'v_mov_b32 {vt}, {idx_sgpr_or_imm*4}')
    else:
        A(f'v_mov_b32 {vt}, {idx_sgpr_or_imm}')
    A(f'''v_mov_b32 {vone}, 1
s_mov_b64 exec, 1
buffer_atomic_add {vone}, {vt}, {srd(R_DBG)}, 0 offen sc1
s_mov_b64 exec, -1''')

_fl = [0]
POLL_SLEEP = 2
PREFETCH = 2
GPRIO = 0
CODEPF = 0
SDELAY = 4
PF2 = False
R_FLG = 8
def get_nonce(vt, vv):
    lp = uid('NONCE')
    A(f'v_mov_b32 {vt}, 0')
    A.label(lp)
    A(f'''buffer_load_dwordx2 v[{vv}:{vv+1}], {vt}, {srd(R_DBG)}, 0 offen sc0 sc1
s_waitcnt vmcnt(0)
v_readfirstlane_b32 s12, v{vv}
v_readfirstlane_b32 s13, v{vv+1}
s_cmp_lg_u32 s12, 0
s_cbranch_scc1 {lp}_ok
s_sleep 1
s_branch {lp}''')
    A.label(lp + '_ok')

def flag_wait(setups, vi, vv, vt, leader=0, st=84):
    lp0 = uid('POLL')
    flag = S_CNT + 16 + 4 * _fl[0]; _fl[0] += 1
    assert _fl[0] <= 12
    A(f'v_mov_b32 {vt}, {flag}')
    A(f's_cmp_lg_u32 s3, {leader}\ns_cbranch_scc1 {lp0}_w')
    for setup in setups:
        lp = uid('PL')
        setup()
        A(f'v_cmp_le_u32 vcc, {3*224}, {vi}\ns_mov_b64 s[14:15], vcc\nv_lshlrev_b32 {vi}, 7, {vi}')
        A.label(lp)
        A(f'''buffer_load_dwordx2 v[{vv}:{vv+1}], {vi}, {srd(R_FLG)}, 0 offen sc0 sc1
s_waitcnt vmcnt(0)
v_cmp_eq_u32 vcc, s12, v{vv}
v_cmp_eq_u32 s[82:83], s13, v{vv+1}
s_and_b64 vcc, vcc, s[82:83]
s_or_b64 vcc, vcc, s[14:15]
s_cmp_eq_u64 vcc, -1
s_cbranch_scc1 {lp}_ok
s_sleep {POLL_SLEEP}
s_branch {lp}''')
        A.label(lp + '_ok')
    A(f'v_mov_b32 v{vv}, 1\nds_write_b32 {vt}, v{vv}\ns_branch {lp0}_done')
    A.label(lp0 + '_w')
    A(f'''ds_read_b32 v{vv}, {vt}
s_waitcnt lgkmcnt(0)
v_readfirstlane_b32 s{st}, v{vv}
s_cmp_eq_u32 s{st}, 1
s_cbranch_scc1 {lp0}_done
s_sleep 1
s_branch {lp0}_w''')
    A.label(lp0 + '_done')

def flag_set(phase, vt, vv):
    A(f'''s_add_u32 s82, s2, {phase*224}
s_lshl_b32 s82, s82, 7
v_mov_b32 {vt}, s82
v_mov_b32 v{vv}, s12
v_mov_b32 v{vv+1}, s13
s_mov_b64 exec, 1
buffer_store_dwordx2 v[{vv}:{vv+1}], {vt}, {srd(R_FLG)}, 0 offen sc0 sc1
s_mov_b64 exec, -1''')

PROF = False
PROF_OFF = 32 << 20
def stamp(i):
    if not PROF: return
    A(f'''s_memrealtime s[94:95]
s_lshl_b32 s96, s2, 3
s_add_u32 s96, s96, s3
s_lshl_b32 s96, s96, 8
s_add_u32 s96, s96, {PROF_OFF + 8*i}
v_mov_b32 v25, s96
s_waitcnt lgkmcnt(0)
v_mov_b32 v26, s94
v_mov_b32 v27, s95
global_store_dwordx2 v25, v[26:27], s[{S_WS}:{S_WS+1}]''')

_st2 = []
def stamp2(i):
    if not PROF: return
    A(f'''s_memtime s[94:95]
s_lshl_b32 s96, s3, 8
s_add_u32 s96, s96, {LDS_SZ + 8*i}
v_mov_b32 v{60 if i < 10 else 12 if i < 28 else 14}, s96
s_waitcnt lgkmcnt(0)
v_mov_b32 v{61 if i < 10 else 13 if i < 28 else 15}, s94
ds_write_b32 v{60 if i < 10 else 12 if i < 28 else 14}, v{61 if i < 10 else 13 if i < 28 else 15}''')
    _st2.append(i)

def flush2():
    if not PROF: return
    A(f'''s_lshl_b32 s96, s3, 8
s_add_u32 s96, s96, {LDS_SZ}
v_lshlrev_b32 v14, 2, v1
v_add_u32 v15, s96, v14
ds_read_b32 v16, v15
s_lshl_b32 s96, s2, 3
s_add_u32 s96, s96, s3
s_lshl_b32 s96, s96, 8
s_add_u32 s96, s96, {PROF_OFF + (4<<20)}
v_add_u32 v14, s96, v14
s_waitcnt lgkmcnt(0)
global_store_dword v14, v16, s[{S_WS}:{S_WS+1}]''')

def prologue():
    A(f'''s_cmp_ge_u32 s2, {NWG}
s_cbranch_scc1 L_END
s_load_dwordx16 s[16:31], s[0:1], 0
s_load_dwordx16 s[32:47], s[0:1], 64
v_lshrrev_b32 v2, 6, v0
v_and_b32 v1, 63, v0
v_readfirstlane_b32 s3, v2
s_waitcnt lgkmcnt(0)''')
    if CODEPF:
        A(f'''s_getpc_b64 s[80:81]
s_and_b32 s80, s80, 0xffffff00
v_lshlrev_b32 v2, 7, v0
v_min_u32 v2, {CODEPF - 128}, v2
global_load_dword v127, v2, s[80:81]''')
    mk_srd(R_X, S_UU, 0, XN_SZ)
    mk_srd(R_XN, S_WS, XN_OFF, XN_SZ)
    mk_srd(R_XNT, S_WS, XNT_OFF, XN_SZ)
    mk_srd(R_DBG, S_DBG, 0, 256)
    mk_srd(R_FLG, S_WS, FLG_OFF, FLG_SZ)
    A(f'''s_mov_b32 s12, 0
s_mov_b32 s13, 0
s_cmp_lg_u32 s2, 0
s_cbranch_scc1 L_NONP
s_cmp_lg_u32 s3, 7
s_cbranch_scc1 L_NONP
s_memrealtime s[80:81]
s_waitcnt lgkmcnt(0)
s_or_b32 s80, s80, 1
v_mov_b32 v2, 0
v_mov_b32 v4, s80
v_mov_b32 v5, s81
s_mov_b64 exec, 1
buffer_store_dwordx2 v[4:5], v2, {srd(R_DBG)}, 0 offen sc0 sc1
s_mov_b64 exec, -1''')
    A.label('L_NONP')
    A(f'''v_mov_b32 v2, {S_CNT}
v_mov_b32 v4, 0
v_mov_b32 v5, 0
v_mov_b32 v6, 0
v_mov_b32 v7, 0
ds_write_b128 v2, v[4:7]
ds_write_b128 v2, v[4:7] offset:16
ds_write_b128 v2, v[4:7] offset:32
ds_write_b128 v2, v[4:7] offset:48''')

def ln_loads():
    A(f'''s_lshl_b32 s80, s2, 3
s_lshl_b32 s81, s3, 1
s_add_u32 s80, s80, s81
s_mul_i32 s81, s80, 896
v_lshlrev_b32 v2, 4, v1
v_add_u32 v2, s81, v2
v_mov_b32 v3, 0x7f000000
v_cmp_gt_u32 vcc, 56, v1
v_cndmask_b32 v2, v3, v2, vcc
buffer_load_dwordx4 v[4:7], v2, {srd(R_X)}, 0 offen
buffer_load_dwordx4 v[36:39], v2, {srd(R_X)}, 0 offen offset:896
s_mov_b32 s81, {1792*896}
buffer_load_dwordx4 v[44:47], v2, {srd(R_X)}, s81 offen
buffer_load_dwordx4 v[48:51], v2, {srd(R_X)}, s81 offen offset:896''')

def ln_rows(srcs, soff, lnb_off):
    inv448 = f2u(1.0 / 448.0)
    for row in range(2):
        S = srcs[row]
        for i in range(4):
            A(f'v_lshlrev_b32 v{8+2*i}, 16, v{S+i}\nv_and_b32 v{9+2*i}, 0xffff0000, v{S+i}')
        A('''v_add_f32 v16, v8, v9
v_add_f32 v17, v10, v11
v_add_f32 v18, v12, v13
v_add_f32 v19, v14, v15
v_add_f32 v16, v16, v17
v_add_f32 v18, v18, v19
v_add_f32 v16, v16, v18''')
        wave_sum('v16', 'v17')
        A(f'''v_mul_f32 v17, v16, v24
v_fma_f32 v18, -v17, v25, v16
v_fma_f32 v17, v18, v24, v17''')
        A('v_mov_b32 v18, 0')
        for i in range(8):
            A(f'v_sub_f32 v19, v{8+i}, v17\nv_fmac_f32 v18, v19, v19')
        A('v_mov_b32 v19, 0\nv_cndmask_b32 v18, v19, v18, vcc')
        wave_sum('v18', 'v19')
        A(f'''v_mul_f32 v19, v18, v24
v_fma_f32 v20, -v19, v25, v18
v_fma_f32 v19, v20, v24, v19
v_cvt_pk_bf16_f32 v17, v17, v19
v_and_b32 v19, 0xffff0000, v17
v_lshlrev_b32 v17, 16, v17
v_add_f32 v19, {f2u(1e-5)}, v19
v_cvt_pk_bf16_f32 v19, v19, v19
v_lshlrev_b32 v19, 16, v19
v_sqrt_f32 v19, v19
v_cvt_pk_bf16_f32 v19, v19, v19
v_lshlrev_b32 v19, 16, v19
v_rcp_f32 v19, v19''')
        O = 20 if row == 0 else 40
        for i in range(4):
            A(f'''v_sub_f32 v{8+2*i}, v{8+2*i}, v17
v_sub_f32 v{9+2*i}, v{9+2*i}, v17
v_cvt_pk_bf16_f32 v{S+i}, v{8+2*i}, v{9+2*i}
v_lshlrev_b32 v{8+2*i}, 16, v{S+i}
v_and_b32 v{9+2*i}, 0xffff0000, v{S+i}
v_mul_f32 v{8+2*i}, v{8+2*i}, v19
v_mul_f32 v{9+2*i}, v{9+2*i}, v19
v_cvt_pk_bf16_f32 v{O+i}, v{8+2*i}, v{9+2*i}''')
        A(f'buffer_store_dwordx4 v[{O}:{O+3}], v2, {srd(R_XN)}, {soff} offen offset:{896*row} sc1')
        for i in range(4):
            A(f'ds_write_b16 v3, v{O+i} offset:{lnb_off+32*i+2*row}\nds_write_b16_d16_hi v3, v{O+i} offset:{lnb_off+32*i+16+2*row}')

def ln_stage():
    global cg_base
    A(f'''s_lshl_b32 s81, s3, 2
s_add_u32 s81, s81, {LNB}
v_mul_u32_u24 v3, 144, v1
v_add_u32 v3, s81, v3
v_cmp_gt_u32 vcc, 56, v1
v_mov_b32 v24, {f2u(1.0 / 448.0)}
v_mov_b32 v25, 0x43e00000
s_waitcnt vmcnt(16)''')
    stamp2(0)
    ln_rows((4, 36), '0', 0)
    stamp2(1)
    lab = uid('LN2')
    A(f's_cmp_ge_u32 s2, 32\ns_cbranch_scc1 {lab}\ns_mov_b32 s90, {1792*896}')
    ln_rows((44, 48), 's90', 9216)
    A.label(lab)
    stamp2(2)
    cg_base += 1
    lds_sync(C_G, 4 * cg_base, 'v4', 'v5')
    stamp2(3)
    A(f'''v_lshrrev_b32 v3, 3, v0
v_mul_u32_u24 v3, 144, v3
v_and_b32 v4, 7, v0
v_lshl_add_u32 v3, v4, 4, v3
v_add_u32 v3, {LNB}, v3
ds_read_b128 v[4:7], v3
ds_read_b128 v[8:11], v3 offset:4608
ds_read_b128 v[12:15], v3 offset:9216
ds_read_b128 v[16:19], v3 offset:13824
v_lshlrev_b32 v3, 4, v0
s_mul_i32 s81, s2, 7168
v_add_u32 v3, s81, v3
v_mov_b32 v20, 0x7f000000
v_cmp_gt_u32 vcc, 192, v0
v_add_u32 v21, 4096, v3
v_cndmask_b32 v21, v20, v21, vcc
s_waitcnt lgkmcnt(0)
buffer_store_dwordx4 v[4:7], v3, {srd(R_XNT)}, 0 offen sc1
buffer_store_dwordx4 v[8:11], v21, {srd(R_XNT)}, 0 offen sc1''')
    lab = uid('LN3')
    A(f'''s_cmp_ge_u32 s2, 32
s_cbranch_scc1 {lab}
s_mov_b32 s81, {224*7168}
buffer_store_dwordx4 v[12:15], v3, {srd(R_XNT)}, s81 offen sc1
buffer_store_dwordx4 v[16:19], v21, {srd(R_XNT)}, s81 offen sc1''')
    A.label(lab)
    stamp2(4)
    A('s_waitcnt vmcnt(0)')
    stamp2(5)
    cg_base += 1
    lds_sync(C_G, 4 * cg_base, 'v4', 'v5')
    stamp2(6)
    lab = uid('LNSIG')
    A(f's_cmp_lg_u32 s3, 0\ns_cbranch_scc1 {lab}')
    get_nonce('v4', 6)
    flag_set(0, 'v4', 6)
    A.label(lab)

ROWS_L = list(range(8)) + [256, 258, 260, 262, 512, 516, 768, 772, 1024, 1280, 1536, 1792, 2048]

def s_param_loads():
    A(f'''s_sub_u32 s87, s3, 4
s_lshr_b32 s85, s87, 1
s_lshl_b32 s84, s2, 1
s_add_u32 s85, s85, s84
s_and_b32 s86, s87, 1
s_lshl_b32 s84, s85, 9
s_lshl_b32 s88, s86, 8
s_add_u32 s84, s84, s88
v_lshlrev_b32 v98, 1, v1
v_add_u32 v98, s84, v98
s_lshl_b32 s84, s85, 1
v_mov_b32 v99, s84''')
    for k, b in enumerate((S_ARE, S_AIM, S_BRE, S_BIM, S_CRE, S_CIM)):
        A(f'global_load_ushort v{100+2*k}, v98, s[{b}:{b+1}]\nglobal_load_ushort v{101+2*k}, v98, s[{b}:{b+1}] offset:128')
    A(f'global_load_ushort v112, v99, s[{S_LDT}:{S_LDT+1}]\nglobal_load_ushort v113, v99, s[{S_DSK}:{S_DSK+1}]')

def interleave(streams):
    out = []
    n = max(len(s) for s in streams)
    for i in range(n):
        for s in streams:
            if i < len(s): out.append(s[i])
    return out

def l2_prefetch():
    A(f'''s_and_b32 s92, s2, 7
s_lshr_b32 s93, s2, 3
s_mul_i32 s94, s93, 37
s_lshr_b32 s94, s94, 8
s_mul_i32 s95, s94, 7
s_sub_u32 s95, s93, s95
s_and_b32 s96, s92, 1
s_mul_i32 s96, s96, 7
s_add_u32 s96, s96, s95
s_mul_i32 s97, s94, 112
s_mul_i32 s98, s87, 28
s_add_u32 s97, s97, s98
v_lshrrev_b32 v6, 1, v1
v_min_u32 v6, 27, v6
v_add_u32 v6, s97, v6
v_mul_u32_u24 v6, 3584, v6
v_and_b32 v7, 1, v1
v_lshl_add_u32 v6, v7, 7, v6
s_lshl_b32 s97, s96, 8
v_add_u32 v6, s97, v6
global_load_dword v96, v6, s[{S_WG}:{S_WG+1}]
global_load_dword v97, v6, s[{S_WU}:{S_WU+1}]
s_mul_i32 s97, s94, 448
s_mul_i32 s98, s87, 112
s_add_u32 s97, s97, s98
v_min_u32 v6, 55, v1
v_add_u32 v6, s97, v6
v_mul_u32_u24 v6, 896, v6
s_lshl_b32 s97, s95, 7
v_add_u32 v6, s97, v6
global_load_dword v98, v6, s[{S_WD}:{S_WD+1}]
v_add_u32 v6, {56*896}, v6
global_load_dword v100, v6, s[{S_WD}:{S_WD+1}]''')

def kgen():
    A('s_waitcnt vmcnt(0)')
    for k in range(14):
        A(f'v_lshlrev_b32 v{100+k}, 16, v{100+k}')
    A(f'''v_mov_b32 v2, {LOG2E}
v_mul_f32 v112, v112, v2
v_exp_f32 v112, v112
v_cvt_pk_bf16_f32 v112, v112, v112
v_lshlrev_b32 v112, 16, v112
s_mul_i32 s84, s87, 2560
s_add_u32 s84, s84, {S_PAR}
v_lshlrev_b32 v3, 2, v1
v_add_u32 v3, s84, v3
v_mov_b32 v4, {INV2PI_HI}
v_mov_b32 v5, {INV2PI_LO}''')
    for h in range(2):
        are, aim, bre, bim, cre, cim = [f'v{100+2*k+h}' for k in range(6)]
        A(f'''v_mul_f32 {are}, v112, {are}
v_mul_f32 {aim}, v112, {aim}
v_mul_f32 {bre}, v112, {bre}
v_mul_f32 {bim}, v112, {bim}
v_mul_f32 v6, {are}, v2
v_mul_f32 v7, {aim}, v4
v_fma_f32 v8, {aim}, v4, -v7
v_fma_f32 v8, {aim}, v5, v8
v_and_b32 v9, 0xffffff00, v7
v_sub_f32 v7, v7, v9
v_add_f32 v7, v7, v8
v_mul_f32 v10, {cre}, {bre}
v_fma_f32 v10, -{cim}, {bim}, v10
v_mul_f32 v11, {cre}, {bim}
v_fma_f32 v11, {cim}, {bre}, v11
ds_write_b32 v3, v6 offset:{256*h}
ds_write_b32 v3, v9 offset:{512+256*h}
ds_write_b32 v3, v7 offset:{1024+256*h}
ds_write_b32 v3, v10 offset:{1536+256*h}
ds_write_b32 v3, v11 offset:{2048+256*h}''')
    if PREFETCH == 1: l2_prefetch()
    A('v_and_b32 v6, 31, v1\nv_mov_b32 v4, 0')
    for i, l in enumerate(ROWS_L):
        if l == 0: continue
        A(f'v_cmp_eq_u32 vcc, {i}, v6\nv_mov_b32 v7, {f2u(float(l))}\nv_cndmask_b32 v4, v4, v7, vcc')
    A(f'''v_lshlrev_b32 v5, 3, v6
v_cvt_f32_u32 v5, v5
v_lshrrev_b32 v3, 5, v1
v_lshlrev_b32 v3, 4, v3
v_add_u32 v3, s84, v3''')
    ACC = 112
    A('v_mov_b32 v99, v113')
    for i in range(16): A(f'v_mov_b32 v{ACC+i}, 0')
    P = [8, 28]
    def preads(pb):
        for k in range(5):
            A(f'ds_read_b128 v[{pb+4*k}:{pb+4*k+3}], v3 offset:{512*k}')
    if SDELAY:
        lpw = uid('SW')
        A(f'v_mov_b32 v6, {C_G}')
        A.label(lpw)
        A(f'''ds_read_b32 v7, v6
s_waitcnt lgkmcnt(0)
v_readfirstlane_b32 s88, v7
s_cmp_ge_u32 s88, {SDELAY}
s_cbranch_scc1 {lpw}_ok
s_sleep 2
s_branch {lpw}''')
        A.label(lpw + '_ok')
    if PREFETCH == 2: l2_prefetch()
    A('s_waitcnt lgkmcnt(0)')
    preads(P[0])
    A('s_mov_b32 s88, 0')
    loop = uid('KG')
    A.label(loop)
    for half in range(2):
        pb = P[half]; pn = P[1 - half]
        A('v_add_u32 v3, 32, v3')
        A('s_waitcnt lgkmcnt(0)')
        preads(pn)
        streams = []
        for e in range(4):
            for xy in range(2):
                t = 64 + (e * 2 + xy) * 4
                a, b, c, d = f'v{t}', f'v{t+1}', f'v{t+2}', f'v{t+3}'
                l = 'v4' if xy == 0 else 'v5'
                ar2, rh, rl, cr, ci = [f'v{pb+4*k+e}' for k in range(5)]
                hi = f'v{48+e}' if xy == 0 else f'v{56+e}'
                lo = f'v{52+e}' if xy == 0 else f'v{60+e}'
                s = [f'v_mul_f32 {b}, {rh}, {l}',
                     f'v_mul_f32 {a}, {ar2}, {l}',
                     f'v_fract_f32 {b}, {b}',
                     f'v_exp_f32 {a}, {a}',
                     f'v_fma_f32 {b}, {rl}, {l}, {b}',
                     f'v_cos_f32 {c}, {b}',
                     f'v_sin_f32 {d}, {b}']
                if xy == 0:
                    s += [f'v_mul_f32 {b}, {a}, {cr}',
                          f'v_mul_f32 {a}, {a}, {ci}',
                          f'v_mul_f32 {hi}, {b}, {c}',
                          f'v_mul_f32 {lo}, {b}, {d}',
                          f'v_fma_f32 {b}, -{a}, {d}, {hi}',
                          f'v_fma_f32 {a}, -{a}, {c}, -{lo}']
                    re_, im_ = b, a
                else:
                    s += [f'v_mul_f32 {b}, {a}, {c}',
                          f'v_mul_f32 {a}, {a}, {d}']
                    re_, im_ = b, a
                s += [f'v_cvt_pk_bf16_f32 {hi}, {re_}, {im_}',
                      f'v_lshlrev_b32 {c}, 16, {hi}',
                      f'v_and_b32 {d}, 0xffff0000, {hi}',
                      f'v_sub_f32 {re_}, {re_}, {c}',
                      f'v_sub_f32 {im_}, {im_}, {d}',
                      f'v_cvt_pk_bf16_f32 {lo}, {re_}, {im_}']
                streams.append(s)
        for x in interleave(streams): A(x)
        acc = f'v[{ACC}:{ACC+15}]'
        A(f'''v_mfma_f32_32x32x16_bf16 {acc}, v[48:51], v[56:59], {acc}
v_mfma_f32_32x32x16_bf16 {acc}, v[48:51], v[60:63], {acc}
v_mfma_f32_32x32x16_bf16 {acc}, v[52:55], v[56:59], {acc}''')
    A(f'''s_add_u32 s88, s88, 1
s_cmp_lt_u32 s88, 8
s_cbranch_scc1 {loop}''')
    stamp(2)
    A(f'''s_lshl_b32 s84, s87, 12
s_add_u32 s84, s84, {S_KQ}
v_lshrrev_b32 v3, 5, v1
v_lshlrev_b32 v3, 9, v3
v_and_b32 v6, 31, v1
v_lshl_add_u32 v3, v6, 2, v3
v_add_u32 v6, s84, v3''')
    for v in range(16):
        A(f'ds_write_b32 v6, v{ACC+v} offset:{(8*(v>>2)+(v&3))*128}')
    A(f'''s_lshr_b32 s89, s87, 1
s_lshl_b32 s89, s89, 2
s_add_u32 s89, s89, {C_P0}''')
    lds_sync('s89', 2, 'v7', 'v8')
    A(f'''s_xor_b32 s84, s87, 1
s_lshl_b32 s84, s84, 12
s_add_u32 s84, s84, {S_KQ}
s_lshl_b32 s90, s86, 11
s_add_u32 s84, s84, s90
v_add_u32 v6, s84, v3
s_lshr_b32 s84, s87, 1
s_lshl_b32 s84, s84, 12
s_add_u32 s84, s84, {S_KC}''')
    for v in range(8):
        A(f'ds_read_b32 v{8+v}, v6 offset:{(8*(v>>2)+(v&3))*128}')
    A('s_cmp_eq_u32 s86, 0\ns_cselect_b64 vcc, -1, 0')
    for v in range(8):
        A(f'v_cndmask_b32 v{16+v}, v{ACC+8+v}, v{ACC+v}, vcc')
    A('v_and_b32 v2, 31, v1\nv_lshlrev_b32 v2, 3, v2\nv_lshrrev_b32 v4, 5, v1\nv_cmp_eq_u32 s[92:93], 0, v4')
    BIG = 4096
    def lrow(r): return ROWS_L[r] if r < 21 else BIG
    for v in range(8):
        c = [[lrow(16 * nh + 8 * (v >> 2) + 4 * hf + (v & 3)) for hf in range(2)] for nh in range(2)]
        t = 32 + 4 * v
        A(f'''v_mov_b32 v{t}, {c[0][0]}
v_mov_b32 v{t+1}, {c[1][0]}
v_cndmask_b32 v{t}, v{t+1}, v{t}, vcc
v_mov_b32 v{t+1}, {c[0][1]}
v_mov_b32 v{t+2}, {c[1][1]}
v_cndmask_b32 v{t+1}, v{t+2}, v{t+1}, vcc
v_cndmask_b32 v{t}, v{t+1}, v{t}, s[92:93]
v_add_u32 v{t}, v{t}, v2
v_cvt_f32_u32 v{t+1}, v{t}
v_lshrrev_b32 v{t+1}, 16, v{t+1}
v_subrev_u32 v{t+1}, 17024, v{t+1}''')
    for v in range(8):
        t = 32 + 4 * v
        A(f'''v_cmp_gt_u32 vcc, 256, v{t}
v_cndmask_b32 v{t+1}, v{t+1}, v{t}, vcc
v_cmp_lt_u32 vcc, 2048, v{t}
v_mov_b32 v{t+2}, 1000
v_cndmask_b32 v{t+1}, v{t+1}, v{t+2}, vcc
v_lshlrev_b32 v{t+1}, 2, v{t+1}
v_add_u32 v{t+1}, s84, v{t+1}''')
    A('s_waitcnt lgkmcnt(0)')
    for v in range(8):
        A(f'''v_add_f32 v{8+v}, v{8+v}, v{16+v}
v_cvt_pk_bf16_f32 v{16+v}, v{8+v}, v{8+v}
v_lshlrev_b32 v24, 16, v{16+v}
v_sub_f32 v{8+v}, v{8+v}, v24
v_cvt_pk_bf16_f32 v{8+v}, v{8+v}, v{8+v}
v_and_b32 v{16+v}, 0xffff, v{16+v}
v_lshl_or_b32 v{8+v}, v{8+v}, 16, v{16+v}
ds_write_b32 v{33+4*v}, v{8+v}''')
    lds_sync('s89', 4, 'v7', 'v8')
    stamp(3)
    NIT = 19
    A(f'''s_lshr_b32 s84, s87, 1
s_mul_i32 s90, s84, {2*KRSZ}
s_add_u32 s90, s90, {S_KREV}
s_lshl_b32 s84, s84, 12
s_add_u32 s84, s84, {S_KC}
s_mul_i32 s91, s86, 1160
v_add_u32 v2, s91, v1
v_lshlrev_b32 v3, 1, v2
v_add_u32 v3, s90, v3''')
    for it in range(NIT):
        t = 8 + 4 * it
        A(f'''v_sub_u32 v{t}, {2063 - 64*it}, v2
v_cvt_f32_i32 v{t+1}, v{t}
v_cvt_pk_bf16_f32 v{t+1}, v{t+1}, v{t+1}
v_and_b32 v{t+1}, 0xffff, v{t+1}
v_subrev_u32 v{t+1}, 17024, v{t+1}
v_cmp_gt_u32 vcc, 256, v{t}
v_cndmask_b32 v{t+1}, v{t+1}, v{t}, vcc
v_lshlrev_b32 v{t+1}, 2, v{t+1}
v_and_b32 v{t+1}, 0xffc, v{t+1}
v_add_u32 v{t+1}, s84, v{t+1}
ds_read_b32 v{t+2}, v{t+1}''')
    A('v_mov_b32 v4, 0\ns_waitcnt lgkmcnt(0)')
    for it in range(NIT):
        t = 8 + 4 * it
        A(f'''v_cmp_gt_u32 vcc, 2048, v{t}
v_cndmask_b32 v{t+2}, v4, v{t+2}, vcc''')
        if it == NIT - 1:
            A(f'v_cmp_gt_u32 vcc, {2320 - 64*(NIT-1)}, v2\ns_and_saveexec_b64 s[92:93], vcc')
        A(f'''ds_write_b16 v3, v{t+2} offset:{128*it}
ds_write_b16_d16_hi v3, v{t+2} offset:{128*it + KRSZ}''')
        if it == NIT - 1:
            A('s_mov_b64 exec, s[92:93]')
    lds_sync('s89', 6, 'v7', 'v8')

def conv():
    labn = uid('SN')
    A(f's_cmp_lg_u32 s3, 4\ns_cbranch_scc1 {labn}')
    get_nonce('v2', 6)
    A.label(labn)
    def mk(c):
        def setup():
            A(f'v_add_u32 v3, {56*c}, v1\nv_mov_b32 v6, 1000\nv_cmp_gt_u32 vcc, 56, v1\nv_cndmask_b32 v3, v6, v3, vcc')
        return setup
    flag_wait([mk(c) for c in range(4)], 'v3', 6, 'v2', leader=4)
    stamp(5)
    A(f'''s_lshl_b32 s84, s85, 12
s_add_u32 s84, s84, {AT_OFF}''')
    mk_srd(R_B, S_WS, 's84', 4096)
    A(f'''s_lshr_b32 s84, s87, 1
s_mul_i32 s91, s84, 8448
s_add_u32 s91, s91, {S_U}
s_lshl_b32 s90, s86, 11
s_add_u32 s90, s90, s91
s_lshl_b32 s84, s86, 7
v_add_u32 v8, s84, v1
v_mul_u32_u24 v8, 7168, v8
s_lshl_b32 s84, s85, 4
v_add_u32 v8, s84, v8
v_mov_b32 v9, 0''')
    for i in range(2):
        A(f's_add_u32 m0, s90, {64 + 1024*i}\ns_mov_b32 s84, {64*7168*i}\nbuffer_load_dwordx4 v8, {srd(R_XNT)}, s84 offen sc1 lds')
    A(f'''v_and_b32 v10, 15, v1
v_lshlrev_b32 v10, 2, v10
s_mul_i32 s84, s86, 4160
s_add_u32 s84, s84, s91
v_add_u32 v10, s84, v10
ds_write_b32 v10, v9
ds_write_b32 v10, v9 offset:4224
s_waitcnt vmcnt(0)''')
    lds_sync('s89', 8, 'v12', 'v13')
    A(f'''s_lshl_b32 s84, s86, 11
s_add_u32 s84, s84, s91
s_add_u32 s84, s84, 48
v_lshlrev_b32 v10, 4, v1
v_add_u32 v10, s84, v10''')
    for i in range(3):
        A(f'ds_read_b128 v[{16+8*i}:{19+8*i}], v10 offset:{1024*i}\nds_read_b32 v{20+8*i}, v10 offset:{1024*i+16}')
    A('s_waitcnt lgkmcnt(0)')
    for i in range(3):
        b = 16 + 8 * i
        for k in range(4):
            A(f'v_alignbit_b32 v{b+k}, v{b+k+1}, v{b+k}, 16')
        if i == 2:
            A(f'v_cmp_gt_u32 vcc, 2, v1\ns_and_saveexec_b64 s[92:93], vcc')
        A(f'ds_write_b128 v10, v[{b}:{b+3}] offset:{1024*i+4224}')
        if i == 2:
            A('s_mov_b64 exec, s[92:93]')
    lds_sync('s89', 10, 'v12', 'v13')
    A(f'''s_lshr_b32 s84, s87, 1
s_mul_i32 s84, s84, {2*KRSZ}
s_mul_i32 s90, s86, {KRSZ}
s_add_u32 s84, s84, s90
s_add_u32 s84, s84, {S_KREV + 480}
v_and_b32 v4, 15, v1
v_lshrrev_b32 v5, 4, v1
v_lshlrev_b32 v6, 5, v4
v_lshlrev_b32 v7, 4, v5
v_sub_u32 v3, v7, v6
v_add_u32 v3, s84, v3
v_lshl_add_u32 v2, v4, 1, v7
v_and_b32 v6, 1, v4
v_xor_b32 v6, 1, v6
v_mul_u32_u24 v6, 4222, v6
v_add_u32 v2, v2, v6
s_add_u32 s84, s91, 2
v_add_u32 v2, s84, v2''')
    for i in range(32): A(f'v_accvgpr_write_b32 a{i}, 0')
    SETS = [('v', 32), ('a', 32)]
    def fr(st, kind, idx, lo=0, n=4):
        p, b = SETS[st]
        r0 = b + kind * 32 + idx * 4 + lo
        return f'{p}[{r0}:{r0+n-1}]'
    def loads(r, st):
        out = []
        for a2 in range(4):
            out.append(f'v_add_u32 v{8+a2}, {64*r + 1024*a2}, v2')
        for a in range(8):
            o = 128 * (a & 1)
            out.append(f'ds_read2_b32 {fr(st,0,a,0,2)}, v{8+(a>>1)} offset0:{o} offset1:{o+1}')
            out.append(f'ds_read2_b32 {fr(st,0,a,2,2)}, v{8+(a>>1)} offset0:{o+2} offset1:{o+3}')
            out.append(f'ds_read_b128 {fr(st,1,a)}, v3 offset:{512*(7-a) + 64*r}')
        return out
    def acc(q): return f'a[{4*q}:{4*q+3}]'
    A(f'''v_add_u32 v8, 4096, v2
ds_read2_b32 v[12:13], v8 offset0:0 offset1:1
ds_read2_b32 v[14:15], v8 offset0:2 offset1:3
ds_read_b128 v[16:19], v3 offset:4096''')
    for x in loads(0, 0): A(x)
    import gen_g
    for r in range(8):
        st = r & 1
        A('s_waitcnt lgkmcnt(0)')
        mf = []
        for a in range(8):
            for b in range(8 - a):
                mf.append(f'v_mfma_f32_16x16x32_bf16 {acc(a+b)}, {fr(st,0,a)}, {fr(st,1,b)}, {acc(a+b)}')
        if r == 0:
            for a in range(1, 8):
                mf.append(f'v_mfma_f32_16x16x32_bf16 {acc(a-1)}, {fr(st,0,a)}, v[16:19], {acc(a-1)}')
            mf.append(f'v_mfma_f32_16x16x32_bf16 {acc(7)}, v[12:15], v[16:19], {acc(7)}')
        gen_g.weave(A, mf, loads(r + 1, 1 - st) if r < 7 else [], gaps=28)
    stamp(6)
    A(f'''s_lshl_b32 s84, s87, 12
s_add_u32 s84, s84, {S_RED}
v_lshlrev_b32 v8, 4, v1
v_add_u32 v9, s84, v8
s_xor_b32 s84, s87, 1
s_lshl_b32 s84, s84, 12
s_add_u32 s84, s84, {S_RED}
v_add_u32 v10, s84, v8
s_cmp_eq_u32 s86, 0
s_cselect_b64 vcc, -1, 0''')
    for i in range(16):
        A(f'''v_accvgpr_read_b32 v{64+i}, a{i}
v_accvgpr_read_b32 v{80+i}, a{16+i}''')
    for i in range(16):
        A(f'''v_cndmask_b32 v{32+i}, v{64+i}, v{80+i}, vcc
v_cndmask_b32 v{48+i}, v{80+i}, v{64+i}, vcc''')
    for q in range(4):
        A(f'ds_write_b128 v9, v[{32+4*q}:{35+4*q}] offset:{1024*q}')
    A(f'''v_lshlrev_b32 v11, 3, v5
v_lshl_add_u32 v11, v4, 5, v11
s_lshl_b32 s84, s86, 11
v_add_u32 v11, s84, v11
s_add_u32 s84, s91, 64
v_add_u32 v14, s84, v11''')
    for q in range(4):
        A(f'ds_read_b64 v[{64+2*q}:{65+2*q}], v14 offset:{512*q}')
    lds_sync('s89', 12, 'v12', 'v13')
    for q in range(4):
        A(f'ds_read_b128 v[{32+4*q}:{35+4*q}], v10 offset:{1024*q}')
    A('s_waitcnt vmcnt(0) lgkmcnt(0)')
    for q in range(4):
        for h in range(2):
            y0, y1 = f'v{48+4*q+2*h}', f'v{49+4*q+2*h}'
            p0, p1 = f'v{32+4*q+2*h}', f'v{33+4*q+2*h}'
            u = f'v{64+2*q+h}'
            A(f'''v_add_f32 {y0}, {y0}, {p0}
v_add_f32 {y1}, {y1}, {p1}
v_cvt_pk_bf16_f32 {y0}, {y0}, {y1}
v_lshlrev_b32 {p0}, 16, {u}
v_and_b32 {p1}, 0xffff0000, {u}
v_mul_f32 {p0}, {p0}, v99
v_mul_f32 {p1}, {p1}, v99
v_cvt_pk_bf16_f32 {p0}, {p0}, {p1}
v_lshlrev_b32 {y1}, 16, {y0}
v_and_b32 {y0}, 0xffff0000, {y0}
v_lshlrev_b32 {p1}, 16, {p0}
v_and_b32 {p0}, 0xffff0000, {p0}
v_add_f32 {y1}, {y1}, {p1}
v_add_f32 {y0}, {y0}, {p0}
v_cvt_pk_bf16_f32 {u}, {y1}, {y0}''')
        A(f'buffer_store_dwordx2 v[{64+2*q}:{65+2*q}], v11, {srd(R_B)}, 0 offen offset:{512*q} sc1')
    A('s_waitcnt vmcnt(0)')
    lds_sync(C_S, 4, 'v12', 'v13')
    lab = uid('ASIG')
    A(f's_cmp_lg_u32 s87, 0\ns_cbranch_scc1 {lab}')
    flag_set(2, 'v3', 4)
    A.label(lab)

def build(with_g=True):
    import gen_g
    G = sys.modules[__name__]
    prologue()
    vm = gen_g.VM(A)
    A('s_cmp_lt_u32 s3, 4\ns_cbranch_scc1 L_GPATH')
    A('s_waitcnt lgkmcnt(0)\ns_barrier')
    stamp(0)
    s_param_loads()
    kgen()
    stamp(4)
    conv()
    stamp(7)
    A('s_branch L_END')
    A.label('L_GPATH')
    ln_loads()
    gen_g.g_early(G)
    for st in range(2): gen_g.w_dma(G, vm, st)
    A('s_waitcnt lgkmcnt(0)\ns_barrier')
    if GPRIO: A(f's_setprio {GPRIO}')
    stamp(0)
    ln_stage()
    stamp(1)
    vm.drain()
    gen_g.gemm1(G, vm)
    gen_g.gemm2(G, vm)
    flush2()
    A.label('L_END')
    A('s_endpgm')
    A.pad()
    hdr = f'''; fused LN + S4 conv + bilinear GLU kernel (generated by dev/gen.py)
; @launch grid=({NWG},1,1) block=(512,1,1) lds={LDS_SZ + (2048 if PROF else 0)}
.amdgcn_target "amdgcn-amd-amdhsa--gfx950"
.text
.globl {KN}
.p2align 8
.type {KN},@function
{KN}:
'''
    ftr = f'''.section .rodata,"a"
.p2align 6
.amdhsa_kernel {KN}
  .amdhsa_next_free_vgpr 256
  .amdhsa_next_free_sgpr 102
  .amdhsa_accum_offset 128
  .amdhsa_group_segment_fixed_size 0
  .amdhsa_kernarg_size 128
  .amdhsa_user_sgpr_count 2
  .amdhsa_user_sgpr_kernarg_segment_ptr 1
  .amdhsa_system_sgpr_workgroup_id_x 1
.end_amdhsa_kernel
'''
    return hdr + A.text() + ftr

if __name__ == '__main__':
    out = sys.argv[1]
    with_g = 'nog' not in sys.argv[2:]
    PROF = 'prof' in sys.argv[2:]
    for a in sys.argv[2:]:
        if a.startswith('sleep='): POLL_SLEEP = int(a[6:])
        if a == 'nopf': PREFETCH = False
        if a == 'pf': PREFETCH = 1
        if a == 'pfb': PREFETCH = 2
        if a.startswith('sdelay='): SDELAY = int(a[7:])
        if a == 'pf2': PF2 = True
        if a.startswith('codepf='): CODEPF = int(a[7:])
        if a.startswith('gprio='): GPRIO = int(a[6:])
    open(out, 'w').write(build(with_g))
```

```python
from gen_g_v3 import VM, weave

XS = 49152

def g_early(G):
    A = G.A
    A(f'''s_and_b32 s80, s2, 7
s_lshr_b32 s81, s2, 3
s_mul_i32 s82, s81, 37
s_lshr_b32 s82, s82, 8
s_mul_i32 s83, s82, 7
s_sub_u32 s83, s81, s83
s_lshr_b32 s84, s80, 1
s_lshl_b32 s85, s84, 2
s_add_u32 s85, s85, s82
s_and_b32 s84, s80, 1
s_mul_i32 s86, s84, 7
s_add_u32 s86, s86, s83
s_lshl_b32 s87, s80, 2
s_add_u32 s87, s87, s82
s_mov_b32 s88, s83
s_cmp_lt_u32 s3, 2
s_cselect_b32 s{G.R_A}, s{G.S_WG}, s{G.S_WU}
s_cselect_b32 s{G.R_A+1}, s{G.S_WG+1}, s{G.S_WU+1}
s_mov_b32 s{G.R_A+2}, {448*3584}
s_mov_b32 s{G.R_A+3}, 0x00020000''')
    A(f'''v_lshrrev_b32 v26, 3, v1
v_and_b32 v27, 7, v1
v_lshrrev_b32 v28, 1, v27
v_bfe_u32 v29, v1, 4, 1
v_lshlrev_b32 v29, 1, v29
v_xor_b32 v28, v28, v29
v_and_b32 v27, 1, v27
v_lshl_add_u32 v28, v28, 1, v27
v_lshlrev_b32 v28, 4, v28
v_mul_u32_u24 v26, 3584, v26
v_add_u32 v30, v26, v28
s_lshl_b32 s80, s86, 8
s_and_b32 s81, s3, 1
s_mul_i32 s81, s81, {32*3584}
s_add_u32 s80, s80, s81
v_add_u32 v30, s80, v30
s_lshl_b32 s89, s3, 12''')

def w_dma_list(G, vm, gs, vo):
    A = G.A
    p, st = divmod(gs, 7)
    out = []
    for i in range(4):
        def f(i=i):
            A(f's_add_u32 m0, s89, {G.G_RING + (gs%3)*16384 + i*1024}\ns_mov_b32 s80, {(64*st + 8*i)*3584 + 128*p}')
            vm.issue(('W', gs), f'buffer_load_dwordx4 {vo}, {G.srd(G.R_A)}, s80 offen lds')
        out.append(f)
    return out

def w_dma(G, vm, gs, vo='v30'):
    for f in w_dma_list(G, vm, gs, vo): f()

def gemm1(G, vm):
    A = G.A
    def setup():
        A(f'''s_cmp_ge_u32 s85, 14
s_cselect_b32 s80, 14, 0
s_sub_u32 s80, s85, s80
s_lshl_b32 s80, s80, 4
v_add_u32 v3, s80, v1
v_mov_b32 v6, 1000
v_cmp_gt_u32 vcc, 16, v1
v_cndmask_b32 v3, v6, v3, vcc''')
    G.flag_wait([setup], 'v3', 6, 'v2')
    G.stamp(2)
    A(f'''v_mov_b32 v2, v30
s_lshl_b32 s80, s85, 7
s_lshl_b32 s81, s3, 5
s_add_u32 s80, s80, s81
v_lshrrev_b32 v12, 3, v1
v_add_u32 v13, s80, v12
v_mul_u32_u24 v13, 896, v13
v_lshrrev_b32 v12, 4, v1
v_and_b32 v14, 7, v1
v_xor_b32 v12, v12, v14
v_lshl_add_u32 v3, v12, 4, v13
v_xor_b32 v12, 4, v12
v_lshl_add_u32 v4, v12, 4, v13''')
    def x_dma_list(gs):
        st = gs % 7
        out = []
        for i in range(4):
            def f(i=i):
                A(f's_add_u32 m0, s89, {G.G_RING + XS + (gs%3)*16384 + i*1024}\ns_mov_b32 s80, {8*i*896 + 128*st}')
                vm.issue(('X', gs), f'buffer_load_dwordx4 {"v3" if i % 2 == 0 else "v4"}, {G.srd(G.R_XN)}, s80 offen sc1 lds')
            out.append(f)
        return out
    for gs in range(3):
        for f in x_dma_list(gs): f()
    A(f'''v_mov_b32 v12, {G.C_NONCE}
ds_read_b64 v[14:15], v12
s_waitcnt lgkmcnt(0)
v_readfirstlane_b32 s12, v14
v_readfirstlane_b32 s13, v15''')
    A(f'''v_lshrrev_b32 v12, 4, v1
v_and_b32 v13, 15, v1
v_lshrrev_b32 v14, 2, v13
v_and_b32 v13, 3, v13
v_lshrrev_b32 v15, 1, v12
v_and_b32 v12, 1, v12
v_lshl_add_u32 v15, v15, 3, v14
v_lshlrev_b32 v15, 7, v15
v_lshl_add_u32 v15, v13, 3, v15
v_lshl_add_u32 v15, v12, 5, v15
v_lshrrev_b32 v14, 1, v14
s_and_b32 s80, s3, 1
v_xor_b32 v14, s80, v14
v_lshl_add_u32 v5, v14, 6, v15
v_add_u32 v5, {G.G_RING}, v5
v_and_b32 v12, 31, v1
v_lshrrev_b32 v13, 5, v1
v_bfe_u32 v14, v1, 1, 3
v_xor_b32 v13, v13, v14
v_lshlrev_b32 v12, 7, v12
s_lshr_b32 s80, s3, 1
s_lshl_b32 s80, s80, 13
s_add_u32 s80, s80, {G.G_RING + XS}
v_add_u32 v12, s80, v12''')
    for s in range(4):
        A(f'v_xor_b32 v14, {2*s}, v13\nv_lshl_add_u32 v{6+s}, v14, 4, v12')
    for i in range(128): A(f'v_accvgpr_write_b32 a{i}, 0')
    FR = [16, 32]
    def reads(gs, s, buf):
        r = FR[buf]
        sl = (gs % 3) * 16384
        out = []
        for m in range(2):
            off = sl + m * 8192 + s * 2048
            out.append(f'ds_read_b64_tr_b16 v[{r+4*m}:{r+4*m+1}], v5 offset:{off}')
            out.append(f'ds_read_b64_tr_b16 v[{r+4*m+2}:{r+4*m+3}], v5 offset:{off+512}')
        for tt in range(2):
            out.append(f'ds_read_b128 v[{r+8+4*tt}:{r+11+4*tt}], v{6+s} offset:{sl + tt*4096}')
        return out
    nbar = [0]
    def arrive():
        nbar[0] += 1
        A(f'''v_mov_b32 v14, {G.C_G}
v_mov_b32 v15, 1
s_mov_b64 exec, 1
ds_add_u32 v14, v15
s_mov_b64 exec, -1''')
    def poll():
        lp = G.uid('GB')
        A.label(lp)
        A(f'''ds_read_b32 v15, v14
s_waitcnt lgkmcnt(0)
v_readfirstlane_b32 s84, v15
s_cmp_ge_u32 s84, {4 * (G.cg_base + nbar[0])}
s_cbranch_scc0 {lp}''')
    G.mk_srd(G.R_C, G.S_WS, G.H_OFF, G.H_SZ)
    A(f'''s_mul_i32 s90, s3, 2560
s_add_u32 s90, s90, {G.H_STG}
v_and_b32 v12, 31, v1
v_mul_u32_u24 v12, 80, v12
v_lshrrev_b32 v13, 5, v1
v_lshl_add_u32 v12, v13, 3, v12
v_add_u32 v10, s90, v12
v_lshrrev_b32 v12, 2, v1
v_mul_u32_u24 v12, 80, v12
v_and_b32 v13, 3, v1
v_lshl_add_u32 v12, v13, 4, v12
v_add_u32 v11, s90, v12
s_mul_i32 s80, s85, 14
s_add_u32 s80, s80, s86
s_lshl_b32 s80, s80, 15
s_and_b32 s81, s3, 1
s_lshl_b32 s81, s81, 13
s_add_u32 s80, s80, s81
s_lshr_b32 s81, s3, 1
s_lshl_b32 s81, s81, 12
s_add_u32 s80, s80, s81
v_lshlrev_b32 v12, 4, v1
v_add_u32 v48, s80, v12''')
    def epi_list(p, tt):
        out = []
        base = 64 * p
        for q in range(4):
            for h in range(2):
                g0 = base + tt * 16 + 4 * q + 2 * h; u0 = g0 + 32
                t = 52 + 8 * h
                out += [f'v_accvgpr_read_b32 v{t}, a{g0}', f'v_accvgpr_read_b32 v{t+1}, a{g0+1}',
                        f'v_accvgpr_read_b32 v{t+2}, a{u0}', f'v_accvgpr_read_b32 v{t+3}, a{u0+1}',
                        f'v_cvt_pk_bf16_f32 v{t}, v{t}, v{t+1}', f'v_cvt_pk_bf16_f32 v{t+2}, v{t+2}, v{t+3}',
                        f'v_lshlrev_b32 v{t+4}, 16, v{t}', f'v_and_b32 v{t+5}, 0xffff0000, v{t}',
                        f'v_lshlrev_b32 v{t+6}, 16, v{t+2}', f'v_and_b32 v{t+7}, 0xffff0000, v{t+2}',
                        f'v_mul_f32 v{t+4}, v{t+4}, v{t+6}', f'v_mul_f32 v{t+5}, v{t+5}, v{t+7}',
                        f'v_cvt_pk_bf16_f32 v{50+h}, v{t+4}, v{t+5}']
            out.append(f'ds_write_b64 v10, v[50:51] offset:{16*q}')
        return out
    def epi_store(p, tt):
        A('s_waitcnt lgkmcnt(0)')
        for it in range(2):
            A(f'ds_read_b128 v[{68+8*tt+4*it}:{71+8*tt+4*it}], v11 offset:{it*16*80}')
        A('s_waitcnt lgkmcnt(0)')
        for it in range(2):
            A(f's_mov_b32 s81, {p*16384 + tt*2048 + it*1024}')
            vm.issue(('HS', p), f'buffer_store_dwordx4 v[{68+8*tt+4*it}:{71+8*tt+4*it}], v48, {G.srd(G.R_C)}, s81 offen sc1')
    def publish(p, cnt):
        lab = G.uid('HS')
        A(f'''v_mov_b32 v14, {cnt}
v_mov_b32 v15, 1
s_mov_b64 exec, 1
ds_add_rtn_u32 v15, v14, v15
s_mov_b64 exec, -1
s_waitcnt lgkmcnt(0)
v_readfirstlane_b32 s84, v15
s_cmp_lg_u32 s84, 3
s_cbranch_scc1 {lab}''')
        G.flag_set(1 + 2 * p, 'v14', 64)
        A.label(lab)
    vm.wait({('X', 0), ('W', 0)})
    arrive(); poll()
    for x in reads(0, 0, 0): A(x)
    buf = 0
    pend = []
    epi = []
    for gs in range(14):
        p = gs // 7
        for s in range(4):
            A('s_waitcnt lgkmcnt(0)')
            r = FR[buf]
            mf = []
            for m in range(2):
                for tt in range(2):
                    ac = 64 * p + m * 32 + tt * 16
                    mf.append(f'v_mfma_f32_32x32x16_bf16 a[{ac}:{ac+15}], v[{r+4*m}:{r+4*m+3}], v[{r+8+4*tt}:{r+11+4*tt}], a[{ac}:{ac+15}]')
            extra = []
            if epi:
                extra = epi[:28]; epi = epi[28:]
            if s < 3:
                fill = reads(gs, s + 1, 1 - buf) + pend[:3] + extra
                pend = pend[3:]
                weave(A, mf, fill, gaps=4)
                if gs == 8 and s == 0:
                    assert not epi
                    epi_store(0, 0)
                    epi = epi_list(0, 1)
                if gs == 9 and s == 1:
                    assert not epi
                    epi_store(0, 1)
                if gs == 11 and s == 0:
                    vm.wait({('HS', 0)})
                    publish(0, G.C_H0)
            elif gs < 13:
                vm.wait({('X', gs + 1), ('W', gs + 1)})
                arrive()
                for x in mf[:2]: A(x)
                for x in extra: A(x)
                poll()
                fill = reads(gs + 1, 0, 1 - buf)
                if gs + 3 < 14:
                    pend = w_dma_list(G, vm, gs + 3, 'v2') + x_dma_list(gs + 3)
                weave(A, mf[2:], fill, gaps=2)
            else:
                for x in mf: A(x)
            buf = 1 - buf
        if gs == 6:
            epi = epi_list(0, 0)
    G.cg_base += nbar[0]
    G.stamp(3)
    for tt in range(2):
        for x in epi_list(1, tt): A(x)
        epi_store(1, tt)
    vm.wait({('HS', 1)})
    publish(1, G.C_H1)
    G.cg_base += 1
    G.lds_sync(G.C_G, 4 * G.cg_base, 'v14', 'v15')
    G.stamp(4)

def gemm2(G, vm):
    A = G.A
    G.mk_srd(G.R_A, G.S_WD, 0, 1792 * 896)
    A(f'''s_mul_i32 s89, s3, 24576
s_add_u32 s89, s89, {G.G_RING}''')
    A(f'''v_lshrrev_b32 v2, 3, v1
v_and_b32 v3, 7, v1
v_lshrrev_b32 v4, 1, v3
v_bfe_u32 v5, v1, 4, 1
v_lshlrev_b32 v5, 1, v5
v_xor_b32 v4, v4, v5
v_and_b32 v3, 1, v3
v_lshl_add_u32 v4, v4, 1, v3
v_lshlrev_b32 v4, 4, v4
v_mul_u32_u24 v2, 896, v2
v_add_u32 v12, v2, v4
s_lshr_b32 s80, s3, 1
s_mul_i32 s80, s80, {896*896}
s_and_b32 s81, s3, 1
s_mul_i32 s81, s81, {32*896}
s_add_u32 s80, s80, s81
s_lshl_b32 s81, s88, 7
s_add_u32 s80, s80, s81
v_add_u32 v12, s80, v12''')
    A(f'''s_lshr_b32 s80, s87, 1
s_mul_i32 s80, s80, 14
s_lshr_b32 s81, s3, 1
s_mul_i32 s81, s81, 7
s_add_u32 s80, s80, s81
s_lshl_b32 s80, s80, 15
s_and_b32 s81, s3, 1
s_lshl_b32 s81, s81, 13
s_add_u32 s80, s80, s81
s_and_b32 s81, s87, 1
s_lshl_b32 s81, s81, 12
s_add_u32 s80, s80, s81
v_lshrrev_b32 v2, 2, v1
v_lshlrev_b32 v2, 6, v2
v_and_b32 v3, 3, v1
v_bfe_u32 v4, v1, 4, 2
v_xor_b32 v3, v3, v4
v_lshl_add_u32 v13, v3, 4, v2
v_add_u32 v13, s80, v13''')
    def wd_list(st):
        out = []
        for i in range(4):
            def f(i=i):
                A(f's_add_u32 m0, s89, {(st%3)*8192 + 4096 + i*1024}\ns_mov_b32 s80, {((st%7)*128 + (st//7)*64 + 8*i)*896}')
                vm.issue(('D', st), f'buffer_load_dwordx4 v12, {G.srd(G.R_A)}, s80 offen lds')
            out.append(f)
        return out
    def h_list(st):
        out = []
        for i in range(4):
            def f(i=i):
                A(f's_add_u32 m0, s89, {(st%3)*8192 + i*1024}\ns_mov_b32 s80, {(st%7)*32768 + (st//7)*16384 + i*1024}')
                vm.issue(('H', st), f'buffer_load_dwordx4 v13, {G.srd(G.R_C)}, s80 offen sc1 lds')
            out.append(f)
        return out
    def prod_idx(dst):
        A(f'''s_lshr_b32 s80, s87, 1
s_and_b32 s81, s80, 3
s_lshr_b32 s80, s80, 2
s_mul_i32 s81, s81, 56
s_lshl_b32 s80, s80, 1
s_add_u32 s80, s80, s81
s_add_u32 s80, s80, 224
v_lshrrev_b32 {dst}, 1, v1
v_lshlrev_b32 {dst}, 3, {dst}
v_and_b32 v6, 1, v1
v_add_u32 {dst}, {dst}, v6
v_add_u32 {dst}, s80, {dst}
v_mov_b32 v6, 1000
v_cmp_gt_u32 vcc, 14, v1
v_cndmask_b32 {dst}, v6, {dst}, vcc''')
    lab = G.uid('WDE')
    A(f's_cmp_eq_u32 s3, 0\ns_cbranch_scc1 {lab}')
    for st in range(3):
        for f in wd_list(st): f()
    A.label(lab)
    vm.drain()
    G.flag_wait([lambda: prod_idx('v3')], 'v3', 6, 'v2')
    G.stamp(5)
    lab = G.uid('WDL')
    A(f's_cmp_lg_u32 s3, 0\ns_cbranch_scc1 {lab}')
    for st in range(3):
        for f in wd_list(st): f()
    A.label(lab)
    vm.drain()
    for st in range(3):
        for f in h_list(st): f()
    prod_idx('v80')
    A(f'''v_cmp_le_u32 vcc, 14, v1
s_mov_b64 s[90:91], vcc
v_add_u32 v80, {2*224}, v80
v_lshlrev_b32 v80, 7, v80
s_lshl_b32 s80, s88, 5
s_add_u32 s80, s80, 448
v_add_u32 v81, s80, v1
v_lshlrev_b32 v81, 7, v81
v_cmp_le_u32 vcc, 32, v1
s_mov_b64 s[92:93], vcc''')
    def flag_block(voff, mask):
        lp = G.uid('FB')
        A.label(lp)
        A(f'''buffer_load_dwordx2 v[82:83], {voff}, {G.srd(G.R_FLG)}, 0 offen sc0 sc1
s_waitcnt vmcnt(0)
v_cmp_eq_u32 vcc, s12, v82
v_cmp_eq_u32 s[82:83], s13, v83
s_and_b64 vcc, vcc, s[82:83]
s_or_b64 vcc, vcc, {mask}
s_cmp_eq_u64 vcc, -1
s_cbranch_scc1 {lp}_ok
s_sleep 1
s_branch {lp}''')
        A.label(lp + '_ok')
    def flag_check(reg, mask, voff):
        lab = G.uid('FC')
        A(f'''v_cmp_eq_u32 vcc, s12, v{reg}
v_cmp_eq_u32 s[82:83], s13, v{reg+1}
s_and_b64 vcc, vcc, s[82:83]
s_or_b64 vcc, vcc, {mask}
s_cmp_eq_u64 vcc, -1
s_cbranch_scc1 {lab}''')
        flag_block(voff, mask)
        A.label(lab)
    A(f'''v_and_b32 v2, 31, v1
v_lshrrev_b32 v3, 5, v1
v_bfe_u32 v8, v1, 2, 2
v_xor_b32 v9, v3, v8
v_xor_b32 v10, 2, v9
v_lshlrev_b32 v2, 6, v2
v_lshl_add_u32 v4, v9, 4, v2
v_lshl_add_u32 v5, v10, 4, v2
v_add_u32 v4, s89, v4
v_add_u32 v5, s89, v5
v_lshrrev_b32 v2, 4, v1
v_and_b32 v3, 15, v1
v_lshrrev_b32 v8, 2, v3
v_and_b32 v3, 3, v3
v_lshrrev_b32 v9, 1, v2
v_and_b32 v2, 1, v2
v_lshl_add_u32 v9, v9, 3, v8
v_lshlrev_b32 v9, 7, v9
v_lshl_add_u32 v9, v3, 3, v9
v_lshl_add_u32 v9, v2, 5, v9
v_lshrrev_b32 v8, 1, v8
v_lshl_add_u32 v6, v8, 6, v9
v_xor_b32 v8, 1, v8
v_lshl_add_u32 v7, v8, 6, v9
v_add_u32 v6, s89, v6
v_add_u32 v7, s89, v7''')
    G.mk_srd(G.R_D, G.S_OUT, 0, G.XN_SZ)
    G.mk_srd(G.R_B, G.S_WS, G.AT_OFF, G.XN_SZ)
    A(f'''v_lshrrev_b32 v2, 2, v0
v_and_b32 v3, 3, v0
s_lshl_b32 s80, s87, 6
v_add_u32 v8, s80, v2
v_mul_u32_u24 v8, 896, v8
v_lshl_add_u32 v8, v3, 5, v8
s_lshl_b32 s80, s88, 7
v_add_u32 v88, s80, v8
s_lshl_b32 s80, s88, 6
s_lshl_b32 s81, s3, 4
s_add_u32 s80, s80, s81
v_lshrrev_b32 v8, 3, v1
v_add_u32 v8, s80, v8
v_lshlrev_b32 v8, 12, v8
v_and_b32 v9, 7, v1
v_lshl_add_u32 v8, v9, 4, v8
s_lshl_b32 s80, s87, 7
v_add_u32 v89, s80, v8''')
    for i in range(64): A(f'v_accvgpr_write_b32 a{i}, 0')
    FR = [16, 48]
    def reads(st, buf):
        base = (st % 3) * 8192
        out = []
        for sp in range(2):
            r = FR[buf] + sp * 16
            for dt in range(2):
                off = base + 4096 + sp * 2048
                out.append(f'ds_read_b64_tr_b16 v[{r+4*dt}:{r+4*dt+1}], v{6+dt} offset:{off}')
                out.append(f'ds_read_b64_tr_b16 v[{r+4*dt+2}:{r+4*dt+3}], v{6+dt} offset:{off+512}')
            for tt in range(2):
                out.append(f'ds_read_b128 v[{r+8+4*tt}:{r+11+4*tt}], v{4+sp} offset:{base + tt*2048}')
        return out
    vm.wait({('H', 0)})
    for x in reads(0, 0): A(x)
    buf = 0
    for st in range(14):
        A('s_waitcnt lgkmcnt(0)')
        fill = []
        if st < 13:
            if st in (5, 6): G.stamp2(28 + 2 * (st - 5))
            vm.wait({('H', st + 1), ('D', st + 1)})
            if st in (5,): G.stamp2(29)
            fill += reads(st + 1, 1 - buf)
        if st == 2:
            vm.issue('fB', f'buffer_load_dwordx2 v[84:85], v80, {G.srd(G.R_FLG)}, 0 offen sc0 sc1')
        if st == 4:
            vm.wait({'fB'})
            flag_check(84, 's[90:91]', 'v80')
        if st == 9:
            vm.issue('fA', f'buffer_load_dwordx2 v[86:87], v81, {G.srd(G.R_FLG)}, 0 offen sc0 sc1')
            vm.issue('x', f'buffer_load_dwordx4 v[96:99], v88, {G.srd(G.R_X)}, 0 offen')
            vm.issue('x', f'buffer_load_dwordx4 v[100:103], v88, {G.srd(G.R_X)}, 0 offen offset:16')
        if st == 12:
            vm.wait({'fA'})
            flag_check(86, 's[92:93]', 'v81')
            vm.issue('at', f'buffer_load_dwordx4 v[104:107], v89, {G.srd(G.R_B)}, 0 offen sc1')
            A(f's_mov_b32 s80, {8*4096}')
            vm.issue('at', f'buffer_load_dwordx4 v[108:111], v89, {G.srd(G.R_B)}, s80 offen sc1')
        if st + 3 < 14:
            fill += [x for pr in zip(h_list(st + 3), wd_list(st + 3)) for x in pr]
        mf = []
        for sp in range(2):
            r = FR[buf] + sp * 16
            for dt in range(2):
                for tt in range(2):
                    ac = (dt * 2 + tt) * 16
                    mf.append(f'v_mfma_f32_32x32x16_bf16 a[{ac}:{ac+15}], v[{r+4*dt}:{r+4*dt+3}], v[{r+8+4*tt}:{r+11+4*tt}], a[{ac}:{ac+15}]')
        weave(A, mf, fill)
        buf = 1 - buf
    G.stamp(6)
    A(f'''v_and_b32 v2, 31, v1
v_mul_u32_u24 v2, 272, v2
v_lshrrev_b32 v3, 5, v1
v_lshl_add_u32 v2, v3, 4, v2
v_add_u32 v2, s89, v2
v_lshlrev_b32 v7, 4, v1
v_add_u32 v7, s89, v7''')
    for dt in range(2):
        for tt in range(2):
            ac = (dt * 2 + tt) * 16
            for q in range(4):
                A(f'ds_write_b128 v2, a[{ac+4*q}:{ac+4*q+3}] offset:{tt*32*272 + (32*dt + 8*q)*4}')
    A('''s_waitcnt vmcnt(0)
ds_write_b128 v7, v[104:107] offset:17408
ds_write_b128 v7, v[108:111] offset:18432''')
    G.cg_base += 1
    G.lds_sync(G.C_G, 4 * G.cg_base, 'v6', 'v7')
    G.stamp(7)
    A(f'''v_lshrrev_b32 v3, 2, v0
v_and_b32 v4, 3, v0
v_mul_u32_u24 v6, 272, v3
v_lshl_add_u32 v6, v4, 6, v6
v_add_u32 v6, {G.G_RING}, v6
v_mul_u32_u24 v7, 24576, v4
v_lshl_add_u32 v7, v3, 1, v7
v_add_u32 v7, {G.G_RING + 17408}, v7
v_add_u32 v24, 49152, v6''')
    for w in range(4):
        for c in range(4):
            r = 32 + w * 16 + c * 4
            if r >= 88: r += 24
            A(f'ds_read_b128 v[{r}:{r+3}], {"v6" if w < 2 else "v24"} offset:{(w&1)*24576 + c*16}')
    for e in range(16):
        A(f'ds_read_u16 v{8+e}, v7 offset:{e*128}')
    A('s_waitcnt lgkmcnt(0)')
    def R3(e): return 80 + e if e < 8 else 104 + e
    for e in range(16):
        A(f'''v_add_f32 v{32+e}, v{32+e}, v{48+e}
v_add_f32 v{64+e}, v{64+e}, v{R3(e)}''')
    for e in range(16):
        A(f'v_add_f32 v{32+e}, v{32+e}, v{64+e}')
    for p in range(8):
        e0, e1 = 2 * p, 2 * p + 1
        xr = 96 + p
        A(f'''v_cvt_pk_bf16_f32 v{32+e0}, v{32+e0}, v{32+e1}
v_lshlrev_b32 v{48+e0}, 16, v{xr}
v_and_b32 v{48+e1}, 0xffff0000, v{xr}
v_lshlrev_b32 v{8+e0}, 16, v{8+e0}
v_lshlrev_b32 v{8+e1}, 16, v{8+e1}
v_add_f32 v{48+e0}, v{48+e0}, v{8+e0}
v_add_f32 v{48+e1}, v{48+e1}, v{8+e1}
v_cvt_pk_bf16_f32 v{48+e0}, v{48+e0}, v{48+e1}
v_lshlrev_b32 v{64+e0}, 16, v{48+e0}
v_and_b32 v{64+e1}, 0xffff0000, v{48+e0}
v_and_b32 v{32+e1}, 0xffff0000, v{32+e0}
v_lshlrev_b32 v{32+e0}, 16, v{32+e0}
v_add_f32 v{64+e0}, v{64+e0}, v{32+e0}
v_add_f32 v{64+e1}, v{64+e1}, v{32+e1}
v_cvt_pk_bf16_f32 v{120+p}, v{64+e0}, v{64+e1}''')
    A(f'''buffer_store_dwordx4 v[120:123], v88, {G.srd(G.R_D)}, 0 offen
buffer_store_dwordx4 v[124:127], v88, {G.srd(G.R_D)}, 0 offen offset:16''')
    G.stamp(8)
```

```python
import sys, math, struct
sys.path.insert(0, 'dev')
from asmkit import Asm

KN = 'parallel_sum__ssm_conv_s4__glu_gated_bilinear__prompt_kernel'
NWG = 224
NROLE = 224

XN_OFF, XNT_OFF, H_OFF, AT_OFF, FLG_OFF = 0, 2 << 20, 4 << 20, 12 << 20, 16 << 20
FLG_SZ = 4 * 224 * 128
XN_SZ = 2048 * 448 * 2
H_SZ = 2048 * 1792 * 2
G_RING = 0
S_PAR = 98304
S_KQ = S_PAR + 10240
S_KC = S_KQ + 16384
S_KREV = S_PAR + 35328
KRSZ = 4640
S_CNT = S_KREV + 4 * KRSZ
LNB = G_RING + 65536
H_STG = S_CNT + 128
LDS_SZ = H_STG + 10240
S_RED = S_PAR
S_U = S_PAR + 16384
C_G, C_S, C_P0, C_P1 = S_CNT, S_CNT + 4, S_CNT + 8, S_CNT + 12
C_H0, C_H1, C_NONCE, C_L2, C_S2 = S_CNT + 64, S_CNT + 68, S_CNT + 72, S_CNT + 80, S_CNT + 84
cg_base = 0
D_A = 56

def f2u(x): return struct.unpack('<I', struct.pack('<f', x))[0]
LOG2E = f2u(1.4426950408889634)
INV2PI_HI = struct.unpack('<f', struct.pack('<f', 1 / (2 * math.pi)))[0]
INV2PI_LO = f2u(1 / (2 * math.pi) - INV2PI_HI)
INV2PI_HI = f2u(INV2PI_HI)

A = Asm()
_uid = [0]
def uid(p):
    _uid[0] += 1
    return f'{p}_{_uid[0]}'

S_UU, S_ARE, S_AIM, S_BRE, S_BIM, S_CRE, S_CIM, S_LDT = 16, 18, 20, 22, 24, 26, 28, 30
S_DSK, S_BX, S_WG, S_WU, S_WD, S_OUT, S_DBG, S_WS = 32, 34, 36, 38, 40, 42, 44, 46
R_X, R_XN, R_XNT, R_DBG, R_A, R_B, R_C, R_D = 48, 52, 56, 60, 64, 68, 72, 76
def srd(r): return f's[{r}:{r+3}]'

def mk_srd(r, base, off, size):
    if off == 0:
        A(f's_mov_b32 s{r}, s{base}\ns_mov_b32 s{r+1}, s{base+1}')
    else:
        A(f's_add_u32 s{r}, s{base}, {off}\ns_addc_u32 s{r+1}, s{base+1}, 0')
    A(f's_mov_b32 s{r+2}, {size}\ns_mov_b32 s{r+3}, 0x00020000')

def wave_sum(v, t, s0=80):
    A(f'''v_add_f32_dpp {t}, {v}, {v} quad_perm:[1,0,3,2] row_mask:0xf bank_mask:0xf
v_add_f32_dpp {v}, {t}, {t} quad_perm:[2,3,0,1] row_mask:0xf bank_mask:0xf
v_add_f32_dpp {t}, {v}, {v} row_half_mirror row_mask:0xf bank_mask:0xf
v_add_f32_dpp {v}, {t}, {t} row_mirror row_mask:0xf bank_mask:0xf
v_readlane_b32 s{s0}, {v}, 0
v_readlane_b32 s{s0+1}, {v}, 16
v_readlane_b32 s{s0+2}, {v}, 32
v_readlane_b32 s{s0+3}, {v}, 48
v_mov_b32 {v}, s{s0}
v_add_f32 {v}, s{s0+1}, {v}
v_add_f32 {v}, s{s0+2}, {v}
v_add_f32 {v}, s{s0+3}, {v}''')

def lds_sync(cnt_addr, target, vt, vone, st=84):
    lp = uid('SYNC')
    A(f'''s_waitcnt lgkmcnt(0)
v_mov_b32 {vt}, {cnt_addr}
v_mov_b32 {vone}, 1
s_mov_b64 exec, 1
ds_add_u32 {vt}, {vone}
s_mov_b64 exec, -1''')
    A.label(lp)
    A(f'''ds_read_b32 {vone}, {vt}
s_waitcnt lgkmcnt(0)
v_readfirstlane_b32 s{st}, {vone}
s_cmp_ge_u32 s{st}, {target}
s_cbranch_scc0 {lp}''')

def dbg_add(idx_sgpr_or_imm, vt, vone):
    if isinstance(idx_sgpr_or_imm, int):
        A(f'v_mov_b32 {vt}, {idx_sgpr_or_imm*4}')
    else:
        A(f'v_mov_b32 {vt}, {idx_sgpr_or_imm}')
    A(f'''v_mov_b32 {vone}, 1
s_mov_b64 exec, 1
buffer_atomic_add {vone}, {vt}, {srd(R_DBG)}, 0 offen sc1
s_mov_b64 exec, -1''')

_fl = [0]
POLL_SLEEP = 2
PREFETCH = 1
GPRIO = 0
SPRIO = 0
CODEPF = 0
SDELAY = 4
PF2 = False
R_FLG = 8
def get_nonce(vt, vv):
    lp = uid('NONCE')
    A(f'v_mov_b32 {vt}, 0')
    A.label(lp)
    A(f'''buffer_load_dwordx2 v[{vv}:{vv+1}], {vt}, {srd(R_DBG)}, 0 offen sc0 sc1
s_waitcnt vmcnt(0)
v_readfirstlane_b32 s12, v{vv}
v_readfirstlane_b32 s13, v{vv+1}
s_cmp_lg_u32 s12, 0
s_cbranch_scc1 {lp}_ok
s_sleep 4
s_branch {lp}''')
    A.label(lp + '_ok')

def lds_nonce(vt, vv):
    lp = uid('LNON')
    A(f'v_mov_b32 {vt}, {C_NONCE}')
    A.label(lp)
    A(f'''ds_read_b64 v[{vv}:{vv+1}], {vt}
s_waitcnt lgkmcnt(0)
v_readfirstlane_b32 s12, v{vv}
v_readfirstlane_b32 s13, v{vv+1}
s_cmp_lg_u32 s12, 0
s_cbranch_scc0 {lp}''')

def flag_wait(setups, vi, vv, vt, leader=0, st=84):
    lp0 = uid('POLL')
    flag = S_CNT + 16 + 4 * _fl[0]; _fl[0] += 1
    assert _fl[0] <= 12
    A(f'v_mov_b32 {vt}, {flag}')
    A(f's_cmp_lg_u32 s3, {leader}\ns_cbranch_scc1 {lp0}_w')
    for setup in setups:
        lp = uid('PL')
        setup()
        A(f'v_cmp_le_u32 vcc, {4*224}, {vi}\ns_mov_b64 s[14:15], vcc\nv_lshlrev_b32 {vi}, 7, {vi}')
        A.label(lp)
        A(f'''buffer_load_dwordx2 v[{vv}:{vv+1}], {vi}, {srd(R_FLG)}, 0 offen sc0 sc1
s_waitcnt vmcnt(0)
v_cmp_eq_u32 vcc, s12, v{vv}
v_cmp_eq_u32 s[82:83], s13, v{vv+1}
s_and_b64 vcc, vcc, s[82:83]
s_or_b64 vcc, vcc, s[14:15]
s_cmp_eq_u64 vcc, -1
s_cbranch_scc1 {lp}_ok
s_sleep {POLL_SLEEP}
s_branch {lp}''')
        A.label(lp + '_ok')
    A(f'v_mov_b32 v{vv}, 1\nds_write_b32 {vt}, v{vv}\ns_branch {lp0}_done')
    A.label(lp0 + '_w')
    A(f'''ds_read_b32 v{vv}, {vt}
s_waitcnt lgkmcnt(0)
v_readfirstlane_b32 s{st}, v{vv}
s_cmp_eq_u32 s{st}, 1
s_cbranch_scc1 {lp0}_done
s_sleep 1
s_branch {lp0}_w''')
    A.label(lp0 + '_done')

def flag_set(phase, vt, vv):
    A(f'''s_add_u32 s82, s2, {phase*224}
s_lshl_b32 s82, s82, 7
v_mov_b32 {vt}, s82
v_mov_b32 v{vv}, s12
v_mov_b32 v{vv+1}, s13
s_mov_b64 exec, 1
buffer_store_dwordx2 v[{vv}:{vv+1}], {vt}, {srd(R_FLG)}, 0 offen sc0 sc1
s_mov_b64 exec, -1''')

PROF = False
PROF_OFF = 32 << 20
def stamp(i):
    if not PROF: return
    A(f'''s_memrealtime s[94:95]
s_lshl_b32 s96, s2, 3
s_add_u32 s96, s96, s3
s_lshl_b32 s96, s96, 8
s_add_u32 s96, s96, {PROF_OFF + 8*i}
v_mov_b32 v25, s96
s_waitcnt lgkmcnt(0)
v_mov_b32 v26, s94
v_mov_b32 v27, s95
global_store_dwordx2 v25, v[26:27], s[{S_WS}:{S_WS+1}]''')

_st2 = []
def stamp2(i):
    if not PROF: return
    A(f'''s_memtime s[94:95]
s_lshl_b32 s96, s3, 8
s_add_u32 s96, s96, {LDS_SZ + 8*i}
v_mov_b32 v{60 if i < 10 else 12 if i < 28 else 14}, s96
s_waitcnt lgkmcnt(0)
v_mov_b32 v{61 if i < 10 else 13 if i < 28 else 15}, s94
ds_write_b32 v{60 if i < 10 else 12 if i < 28 else 14}, v{61 if i < 10 else 13 if i < 28 else 15}''')
    _st2.append(i)

def flush2():
    if not PROF: return
    A(f'''s_lshl_b32 s96, s3, 8
s_add_u32 s96, s96, {LDS_SZ}
v_lshlrev_b32 v14, 2, v1
v_add_u32 v15, s96, v14
ds_read_b32 v16, v15
s_lshl_b32 s96, s2, 3
s_add_u32 s96, s96, s3
s_lshl_b32 s96, s96, 8
s_add_u32 s96, s96, {PROF_OFF + (4<<20)}
v_add_u32 v14, s96, v14
s_waitcnt lgkmcnt(0)
global_store_dword v14, v16, s[{S_WS}:{S_WS+1}]''')

def prologue():
    A(f'''s_cmp_ge_u32 s2, {NWG}
s_cbranch_scc1 L_END
s_load_dwordx16 s[16:31], s[0:1], 0
s_load_dwordx16 s[32:47], s[0:1], 64
v_lshrrev_b32 v2, 6, v0
v_and_b32 v1, 63, v0
v_readfirstlane_b32 s3, v2
s_waitcnt lgkmcnt(0)''')
    if CODEPF:
        A(f'''s_getpc_b64 s[80:81]
s_and_b32 s80, s80, 0xffffff00
v_lshlrev_b32 v2, 7, v0
v_min_u32 v2, {CODEPF - 128}, v2
global_load_dword v127, v2, s[80:81]''')
    mk_srd(R_X, S_UU, 0, XN_SZ)
    mk_srd(R_XN, S_WS, XN_OFF, XN_SZ)
    mk_srd(R_XNT, S_WS, XNT_OFF, XN_SZ)
    mk_srd(R_DBG, S_DBG, 0, 256)
    mk_srd(R_FLG, S_WS, FLG_OFF, FLG_SZ)
    A(f'''s_mov_b32 s12, 0
s_mov_b32 s13, 0
s_cmp_lg_u32 s2, 0
s_cbranch_scc1 L_NONP
s_cmp_lg_u32 s3, 7
s_cbranch_scc1 L_NONP
s_memrealtime s[80:81]
s_waitcnt lgkmcnt(0)
s_or_b32 s80, s80, 1
v_mov_b32 v2, 0
v_mov_b32 v4, s80
v_mov_b32 v5, s81
s_mov_b64 exec, 1
buffer_store_dwordx2 v[4:5], v2, {srd(R_DBG)}, 0 offen sc0 sc1
s_mov_b64 exec, -1''')
    A.label('L_NONP')
    A(f'''v_mov_b32 v2, {S_CNT}
v_mov_b32 v4, 0
v_mov_b32 v5, 0
v_mov_b32 v6, 0
v_mov_b32 v7, 0
ds_write_b128 v2, v[4:7]
ds_write_b128 v2, v[4:7] offset:16
ds_write_b128 v2, v[4:7] offset:32
ds_write_b128 v2, v[4:7] offset:48
ds_write_b128 v2, v[4:7] offset:64
ds_write_b128 v2, v[4:7] offset:80''')

def ln_loads(extra):
    A(f'''s_lshl_b32 s80, s2, 3
s_and_b32 s81, s3, 3
s_lshl_b32 s81, s81, 1
s_add_u32 s80, s80, s81
s_add_u32 s80, s80, {1792 if extra else 0}
s_mul_i32 s81, s80, 896
v_lshlrev_b32 v2, 4, v1
v_add_u32 v2, s81, v2
v_mov_b32 v3, 0x7f000000
v_cmp_gt_u32 vcc, 56, v1
v_cndmask_b32 v2, v3, v2, vcc
buffer_load_dwordx4 v[4:7], v2, {srd(R_X)}, 0 offen
buffer_load_dwordx4 v[36:39], v2, {srd(R_X)}, 0 offen offset:896''')

def ln_prep(wait):
    A(f'''s_and_b32 s81, s3, 3
s_lshl_b32 s81, s81, 2
s_add_u32 s81, s81, {LNB}
v_mul_u32_u24 v3, 144, v1
v_add_u32 v3, s81, v3
v_cmp_gt_u32 vcc, 56, v1
v_mov_b32 v24, {f2u(1.0 / 448.0)}
v_mov_b32 v25, 0x43e00000
s_waitcnt vmcnt({wait})''')

def ln_extra():
    lab = uid('LNX')
    A(f's_cmp_ge_u32 s2, 32\ns_cbranch_scc1 {lab}')
    ln_prep(14)
    ln_rows((4, 36), '0', 9216)
    A(f'''s_waitcnt vmcnt(0) lgkmcnt(0)
v_mov_b32 v4, {C_L2}
v_mov_b32 v5, 1
s_mov_b64 exec, 1
ds_add_u32 v4, v5
s_mov_b64 exec, -1''')
    A.label(lab)

def ln_rows(srcs, soff, lnb_off):
    inv448 = f2u(1.0 / 448.0)
    for row in range(2):
        S = srcs[row]
        for i in range(4):
            A(f'v_lshlrev_b32 v{8+2*i}, 16, v{S+i}\nv_and_b32 v{9+2*i}, 0xffff0000, v{S+i}')
        A('''v_add_f32 v16, v8, v9
v_add_f32 v17, v10, v11
v_add_f32 v18, v12, v13
v_add_f32 v19, v14, v15
v_add_f32 v16, v16, v17
v_add_f32 v18, v18, v19
v_add_f32 v16, v16, v18''')
        wave_sum('v16', 'v17')
        A(f'''v_mul_f32 v17, v16, v24
v_fma_f32 v18, -v17, v25, v16
v_fma_f32 v17, v18, v24, v17''')
        A('v_mov_b32 v18, 0')
        for i in range(8):
            A(f'v_sub_f32 v19, v{8+i}, v17\nv_fmac_f32 v18, v19, v19')
        A('v_mov_b32 v19, 0\nv_cndmask_b32 v18, v19, v18, vcc')
        wave_sum('v18', 'v19')
        A(f'''v_mul_f32 v19, v18, v24
v_fma_f32 v20, -v19, v25, v18
v_fma_f32 v19, v20, v24, v19
v_cvt_pk_bf16_f32 v17, v17, v19
v_and_b32 v19, 0xffff0000, v17
v_lshlrev_b32 v17, 16, v17
v_add_f32 v19, {f2u(1e-5)}, v19
v_cvt_pk_bf16_f32 v19, v19, v19
v_lshlrev_b32 v19, 16, v19
v_sqrt_f32 v19, v19
v_cvt_pk_bf16_f32 v19, v19, v19
v_lshlrev_b32 v19, 16, v19
v_rcp_f32 v19, v19''')
        O = 20 if row == 0 else 40
        for i in range(4):
            A(f'''v_sub_f32 v{8+2*i}, v{8+2*i}, v17
v_sub_f32 v{9+2*i}, v{9+2*i}, v17
v_cvt_pk_bf16_f32 v{S+i}, v{8+2*i}, v{9+2*i}
v_lshlrev_b32 v{8+2*i}, 16, v{S+i}
v_and_b32 v{9+2*i}, 0xffff0000, v{S+i}
v_mul_f32 v{8+2*i}, v{8+2*i}, v19
v_mul_f32 v{9+2*i}, v{9+2*i}, v19
v_cvt_pk_bf16_f32 v{O+i}, v{8+2*i}, v{9+2*i}''')
        A(f'buffer_store_dwordx4 v[{O}:{O+3}], v2, {srd(R_XN)}, {soff} offen offset:{896*row} sc1')
        for i in range(4):
            A(f'ds_write_b16 v3, v{O+i} offset:{lnb_off+32*i+2*row}\nds_write_b16_d16_hi v3, v{O+i} offset:{lnb_off+32*i+16+2*row}')

def ln_stage():
    global cg_base
    ln_prep(12)
    stamp2(0)
    ln_rows((4, 36), '0', 0)
    stamp2(1)
    cg_base += 1
    lds_sync(C_G, 4 * cg_base, 'v4', 'v5')
    lab = uid('LN2')
    A(f's_cmp_ge_u32 s2, 32\ns_cbranch_scc1 {lab}\nv_mov_b32 v4, {C_L2}')
    A.label(lab + '_w')
    A(f'''ds_read_b32 v5, v4
s_waitcnt lgkmcnt(0)
v_readfirstlane_b32 s84, v5
s_cmp_ge_u32 s84, 4
s_cbranch_scc0 {lab}_w''')
    A.label(lab)
    stamp2(3)
    A(f'''v_lshrrev_b32 v3, 3, v0
v_mul_u32_u24 v3, 144, v3
v_and_b32 v4, 7, v0
v_lshl_add_u32 v3, v4, 4, v3
v_add_u32 v3, {LNB}, v3
ds_read_b128 v[4:7], v3
ds_read_b128 v[8:11], v3 offset:4608
ds_read_b128 v[12:15], v3 offset:9216
ds_read_b128 v[16:19], v3 offset:13824
v_lshlrev_b32 v3, 4, v0
s_mul_i32 s81, s2, 7168
v_add_u32 v3, s81, v3
v_mov_b32 v20, 0x7f000000
v_cmp_gt_u32 vcc, 192, v0
v_add_u32 v21, 4096, v3
v_cndmask_b32 v21, v20, v21, vcc
s_waitcnt lgkmcnt(0)
buffer_store_dwordx4 v[4:7], v3, {srd(R_XNT)}, 0 offen sc1
buffer_store_dwordx4 v[8:11], v21, {srd(R_XNT)}, 0 offen sc1''')
    lab = uid('LN3')
    A(f'''s_cmp_ge_u32 s2, 32
s_cbranch_scc1 {lab}
s_mov_b32 s81, {224*7168}
buffer_store_dwordx4 v[12:15], v3, {srd(R_XNT)}, s81 offen sc1
buffer_store_dwordx4 v[16:19], v21, {srd(R_XNT)}, s81 offen sc1''')
    A.label(lab)
    stamp2(4)
    A('s_waitcnt vmcnt(0)')
    stamp2(5)
    cg_base += 1
    lds_sync(C_G, 4 * cg_base, 'v4', 'v5')
    stamp2(6)
    lab = uid('LNSIG')
    A(f's_cmp_lg_u32 s3, 0\ns_cbranch_scc1 {lab}')
    lds_nonce('v4', 6)
    flag_set(0, 'v4', 6)
    A.label(lab)

ROWS_L = list(range(8)) + [256, 258, 260, 262, 512, 516, 768, 772, 1024, 1280, 1536, 1792, 2048]

def s_param_loads():
    A(f'''s_sub_u32 s87, s3, 4
s_lshr_b32 s85, s87, 1
s_lshl_b32 s84, s2, 1
s_add_u32 s85, s85, s84
s_and_b32 s86, s87, 1
s_lshl_b32 s84, s85, 9
s_lshl_b32 s88, s86, 8
s_add_u32 s84, s84, s88
v_lshlrev_b32 v98, 1, v1
v_add_u32 v98, s84, v98
s_lshl_b32 s84, s85, 1
v_mov_b32 v99, s84''')
    for k, b in enumerate((S_ARE, S_AIM, S_BRE, S_BIM, S_CRE, S_CIM)):
        A(f'global_load_ushort v{100+2*k}, v98, s[{b}:{b+1}]\nglobal_load_ushort v{101+2*k}, v98, s[{b}:{b+1}] offset:128')
    A(f'global_load_ushort v112, v99, s[{S_LDT}:{S_LDT+1}]\nglobal_load_ushort v113, v99, s[{S_DSK}:{S_DSK+1}]')

def interleave(streams):
    out = []
    n = max(len(s) for s in streams)
    for i in range(n):
        for s in streams:
            if i < len(s): out.append(s[i])
    return out

def l2_prefetch(which):
    A(f'''s_and_b32 s92, s2, 7
s_lshr_b32 s93, s2, 3
s_mul_i32 s94, s93, 37
s_lshr_b32 s94, s94, 8
s_mul_i32 s95, s94, 7
s_sub_u32 s95, s93, s95
s_and_b32 s96, s92, 1
s_mul_i32 s96, s96, 7
s_add_u32 s96, s96, s95''')
    if which == 0:
        A(f'''s_mul_i32 s97, s94, 112
s_mul_i32 s98, s87, 28
s_add_u32 s97, s97, s98
v_lshrrev_b32 v6, 1, v1
v_min_u32 v6, 27, v6
v_add_u32 v6, s97, v6
v_mul_u32_u24 v6, 3584, v6
v_and_b32 v7, 1, v1
v_lshl_add_u32 v6, v7, 7, v6
s_lshl_b32 s97, s96, 8
v_add_u32 v6, s97, v6
global_load_dword v96, v6, s[{S_WG}:{S_WG+1}]
global_load_dword v97, v6, s[{S_WU}:{S_WU+1}]''')
    else:
        A(f'''s_mul_i32 s97, s94, 448
s_mul_i32 s98, s87, 112
s_add_u32 s97, s97, s98
v_min_u32 v6, 55, v1
v_add_u32 v6, s97, v6
v_mul_u32_u24 v6, 896, v6
s_lshl_b32 s97, s95, 7
v_add_u32 v6, s97, v6
global_load_dword v98, v6, s[{S_WD}:{S_WD+1}]
v_add_u32 v6, {56*896}, v6
global_load_dword v100, v6, s[{S_WD}:{S_WD+1}]''')

def s_precompute():
    A(f'''s_lshr_b32 s84, s87, 1
s_lshl_b32 s84, s84, 12
s_add_u32 s84, s84, {S_KC}
s_cmp_eq_u32 s86, 0
s_cselect_b64 vcc, -1, 0
v_and_b32 v2, 31, v1
v_lshlrev_b32 v2, 3, v2
v_lshrrev_b32 v6, 5, v1
v_cmp_eq_u32 s[92:93], 0, v6''')
    BIG = 4096
    def lrow(r): return ROWS_L[r] if r < 21 else BIG
    for v in range(8):
        c = [[lrow(16 * nh + 8 * (v >> 2) + 4 * hf + (v & 3)) for hf in range(2)] for nh in range(2)]
        t = 32 + 4 * v
        A(f'''v_mov_b32 v{t}, {c[0][0]}
v_mov_b32 v{t+1}, {c[1][0]}
v_cndmask_b32 v{t}, v{t+1}, v{t}, vcc
v_mov_b32 v{t+1}, {c[0][1]}
v_mov_b32 v{t+2}, {c[1][1]}
v_cndmask_b32 v{t+1}, v{t+2}, v{t+1}, vcc
v_cndmask_b32 v{t}, v{t+1}, v{t}, s[92:93]
v_add_u32 v{t}, v{t}, v2
v_cvt_f32_u32 v{t+1}, v{t}
v_lshrrev_b32 v{t+1}, 16, v{t+1}
v_subrev_u32 v{t+1}, 17024, v{t+1}''')
    for v in range(8):
        t = 32 + 4 * v
        A(f'''v_cmp_gt_u32 vcc, 256, v{t}
v_cndmask_b32 v{t+1}, v{t+1}, v{t}, vcc
v_cmp_lt_u32 vcc, 2048, v{t}
v_mov_b32 v{t+2}, 1000
v_cndmask_b32 v{t+1}, v{t+1}, v{t+2}, vcc
v_lshlrev_b32 v{t+1}, 2, v{t+1}
v_add_u32 v{t+1}, s84, v{t+1}
v_accvgpr_write_b32 a{96+v}, v{t+1}''')
    A(f'''s_mul_i32 s91, s86, 1160
v_add_u32 v2, s91, v1
v_mov_b32 v6, 1001''')
    for it in range(19):
        t = 8 + 4 * (it % 6)
        A(f'''v_sub_u32 v{t}, {2063 - 64*it}, v2
v_cvt_f32_i32 v{t+1}, v{t}
v_cvt_pk_bf16_f32 v{t+1}, v{t+1}, v{t+1}
v_and_b32 v{t+1}, 0xffff, v{t+1}
v_subrev_u32 v{t+1}, 17024, v{t+1}
v_cmp_gt_u32 vcc, 256, v{t}
v_cndmask_b32 v{t+1}, v{t+1}, v{t}, vcc
v_cmp_gt_u32 vcc, 2048, v{t}
v_cndmask_b32 v{t+1}, v6, v{t+1}, vcc
v_lshlrev_b32 v{t+1}, 2, v{t+1}
v_add_u32 v{t+1}, s84, v{t+1}
v_accvgpr_write_b32 a{104+it}, v{t+1}''')
    A(f'''s_add_u32 s84, s84, 4004
v_mov_b32 v6, s84
v_mov_b32 v7, 0
ds_write_b32 v6, v7''')

def kgen():
    A('s_waitcnt vmcnt(0)')
    for k in range(14):
        A(f'v_lshlrev_b32 v{100+k}, 16, v{100+k}')
    A(f'''v_mov_b32 v2, {LOG2E}
v_mul_f32 v112, v112, v2
v_exp_f32 v112, v112
v_cvt_pk_bf16_f32 v112, v112, v112
v_lshlrev_b32 v112, 16, v112
s_mul_i32 s84, s87, 2560
s_add_u32 s84, s84, {S_PAR}
v_lshlrev_b32 v3, 2, v1
v_add_u32 v3, s84, v3
v_mov_b32 v4, {INV2PI_HI}
v_mov_b32 v5, {INV2PI_LO}''')
    for h in range(2):
        are, aim, bre, bim, cre, cim = [f'v{100+2*k+h}' for k in range(6)]
        A(f'''v_mul_f32 {are}, v112, {are}
v_mul_f32 {aim}, v112, {aim}
v_mul_f32 {bre}, v112, {bre}
v_mul_f32 {bim}, v112, {bim}
v_mul_f32 v6, {are}, v2
v_mul_f32 v7, {aim}, v4
v_fma_f32 v8, {aim}, v4, -v7
v_fma_f32 v8, {aim}, v5, v8
v_and_b32 v9, 0xffffff00, v7
v_sub_f32 v7, v7, v9
v_add_f32 v7, v7, v8
v_mul_f32 v10, {cre}, {bre}
v_fma_f32 v10, -{cim}, {bim}, v10
v_mul_f32 v11, {cre}, {bim}
v_fma_f32 v11, {cim}, {bre}, v11
ds_write_b32 v3, v6 offset:{256*h}
ds_write_b32 v3, v9 offset:{512+256*h}
ds_write_b32 v3, v7 offset:{1024+256*h}
ds_write_b32 v3, v10 offset:{1536+256*h}
ds_write_b32 v3, v11 offset:{2048+256*h}''')
    if PREFETCH == 1: l2_prefetch(0)
    s_precompute()
    A(f's_mul_i32 s84, s87, 2560\ns_add_u32 s84, s84, {S_PAR}')
    A('v_and_b32 v6, 31, v1\nv_mov_b32 v4, 0')
    for i, l in enumerate(ROWS_L):
        if l == 0: continue
        A(f'v_cmp_eq_u32 vcc, {i}, v6\nv_mov_b32 v7, {f2u(float(l))}\nv_cndmask_b32 v4, v4, v7, vcc')
    A(f'''v_lshlrev_b32 v5, 3, v6
v_cvt_f32_u32 v5, v5
v_lshrrev_b32 v3, 5, v1
v_lshlrev_b32 v3, 4, v3
v_add_u32 v3, s84, v3''')
    ACC = 112
    A('v_mov_b32 v99, v113')
    for i in range(16): A(f'v_mov_b32 v{ACC+i}, 0')
    P = [8, 28]
    def preads(pb):
        for k in range(5):
            A(f'ds_read_b128 v[{pb+4*k}:{pb+4*k+3}], v3 offset:{512*k}')
    if SDELAY:
        lpw = uid('SW')
        A(f'v_mov_b32 v6, {C_G}')
        A.label(lpw)
        A(f'''ds_read_b32 v7, v6
s_waitcnt lgkmcnt(0)
v_readfirstlane_b32 s88, v7
s_cmp_ge_u32 s88, {SDELAY}
s_cbranch_scc1 {lpw}_ok
s_sleep 2
s_branch {lpw}''')
        A.label(lpw + '_ok')
    if PREFETCH == 2: l2_prefetch(0)
    A('s_waitcnt lgkmcnt(0)')
    preads(P[0])
    A('s_mov_b32 s88, 0')
    loop = uid('KG')
    A.label(loop)
    for half in range(2):
        pb = P[half]; pn = P[1 - half]
        A('v_add_u32 v3, 32, v3')
        A('s_waitcnt lgkmcnt(0)')
        preads(pn)
        streams = []
        for e in range(4):
            for xy in range(2):
                t = 64 + (e * 2 + xy) * 4
                a, b, c, d = f'v{t}', f'v{t+1}', f'v{t+2}', f'v{t+3}'
                l = 'v4' if xy == 0 else 'v5'
                ar2, rh, rl, cr, ci = [f'v{pb+4*k+e}' for k in range(5)]
                hi = f'v{48+e}' if xy == 0 else f'v{56+e}'
                lo = f'v{52+e}' if xy == 0 else f'v{60+e}'
                s = [f'v_mul_f32 {b}, {rh}, {l}',
                     f'v_mul_f32 {a}, {ar2}, {l}',
                     f'v_fract_f32 {b}, {b}',
                     f'v_exp_f32 {a}, {a}',
                     f'v_fma_f32 {b}, {rl}, {l}, {b}',
                     f'v_cos_f32 {c}, {b}',
                     f'v_sin_f32 {d}, {b}']
                if xy == 0:
                    s += [f'v_mul_f32 {b}, {a}, {cr}',
                          f'v_mul_f32 {a}, {a}, {ci}',
                          f'v_mul_f32 {hi}, {b}, {c}',
                          f'v_mul_f32 {lo}, {b}, {d}',
                          f'v_fma_f32 {b}, -{a}, {d}, {hi}',
                          f'v_fma_f32 {a}, -{a}, {c}, -{lo}']
                    re_, im_ = b, a
                else:
                    s += [f'v_mul_f32 {b}, {a}, {c}',
                          f'v_mul_f32 {a}, {a}, {d}']
                    re_, im_ = b, a
                s += [f'v_cvt_pk_bf16_f32 {hi}, {re_}, {im_}',
                      f'v_lshlrev_b32 {c}, 16, {hi}',
                      f'v_and_b32 {d}, 0xffff0000, {hi}',
                      f'v_sub_f32 {re_}, {re_}, {c}',
                      f'v_sub_f32 {im_}, {im_}, {d}',
                      f'v_cvt_pk_bf16_f32 {lo}, {re_}, {im_}']
                streams.append(s)
        for x in interleave(streams): A(x)
        acc = f'v[{ACC}:{ACC+15}]'
        A(f'''v_mfma_f32_32x32x16_bf16 {acc}, v[48:51], v[56:59], {acc}
v_mfma_f32_32x32x16_bf16 {acc}, v[48:51], v[60:63], {acc}
v_mfma_f32_32x32x16_bf16 {acc}, v[52:55], v[56:59], {acc}''')
    A(f'''s_add_u32 s88, s88, 1
s_cmp_lt_u32 s88, 8
s_cbranch_scc1 {loop}''')
    stamp(2)
    if PREFETCH: l2_prefetch(1)
    A(f'''s_lshl_b32 s84, s87, 12
s_add_u32 s84, s84, {S_KQ}
v_lshrrev_b32 v3, 5, v1
v_lshlrev_b32 v3, 9, v3
v_and_b32 v6, 31, v1
v_lshl_add_u32 v3, v6, 2, v3
v_add_u32 v6, s84, v3''')
    for v in range(16):
        A(f'ds_write_b32 v6, v{ACC+v} offset:{(8*(v>>2)+(v&3))*128}')
    A(f'''s_lshr_b32 s89, s87, 1
s_lshl_b32 s89, s89, 2
s_add_u32 s89, s89, {C_P0}''')
    lds_sync('s89', 2, 'v7', 'v8')
    A(f'''s_xor_b32 s84, s87, 1
s_lshl_b32 s84, s84, 12
s_add_u32 s84, s84, {S_KQ}
s_lshl_b32 s90, s86, 11
s_add_u32 s84, s84, s90
v_add_u32 v6, s84, v3
s_lshr_b32 s84, s87, 1
s_lshl_b32 s84, s84, 12
s_add_u32 s84, s84, {S_KC}''')
    for v in range(8):
        A(f'ds_read_b32 v{8+v}, v6 offset:{(8*(v>>2)+(v&3))*128}')
    A('s_cmp_eq_u32 s86, 0\ns_cselect_b64 vcc, -1, 0')
    for v in range(8):
        A(f'v_cndmask_b32 v{16+v}, v{ACC+8+v}, v{ACC+v}, vcc')
    for v in range(8):
        A(f'v_accvgpr_read_b32 v{33+4*v}, a{96+v}')
    A('s_waitcnt lgkmcnt(0)')
    for v in range(8):
        A(f'''v_add_f32 v{8+v}, v{8+v}, v{16+v}
v_cvt_pk_bf16_f32 v{16+v}, v{8+v}, v{8+v}
v_lshlrev_b32 v24, 16, v{16+v}
v_sub_f32 v{8+v}, v{8+v}, v24
v_cvt_pk_bf16_f32 v{8+v}, v{8+v}, v{8+v}
v_and_b32 v{16+v}, 0xffff, v{16+v}
v_lshl_or_b32 v{8+v}, v{8+v}, 16, v{16+v}
ds_write_b32 v{33+4*v}, v{8+v}''')
    lds_sync('s89', 4, 'v7', 'v8')
    stamp(3)
    NIT = 19
    A(f'''s_lshr_b32 s84, s87, 1
s_mul_i32 s90, s84, {2*KRSZ}
s_add_u32 s90, s90, {S_KREV}
s_mul_i32 s91, s86, 1160
v_add_u32 v2, s91, v1
v_lshlrev_b32 v3, 1, v2
v_add_u32 v3, s90, v3''')
    for it in range(NIT):
        A(f'v_accvgpr_read_b32 v{8+it}, a{104+it}')
    for it in range(NIT):
        A(f'ds_read_b32 v{32+it}, v{8+it}')
    for it in range(NIT):
        A(f's_waitcnt lgkmcnt({min(15, 2*it + NIT - 1 - it) if False else 0})' if it == 0 else '')
        if it == NIT - 1:
            A(f'v_cmp_gt_u32 vcc, {2320 - 64*(NIT-1)}, v2\ns_and_saveexec_b64 s[92:93], vcc')
        A(f'''ds_write_b16 v3, v{32+it} offset:{128*it}
ds_write_b16_d16_hi v3, v{32+it} offset:{128*it + KRSZ}''')
        if it == NIT - 1:
            A('s_mov_b64 exec, s[92:93]')
    lds_sync(C_S, 4, 'v7', 'v8')

def conv():
    labn = uid('SN')
    A(f's_cmp_lg_u32 s3, 4\ns_cbranch_scc1 {labn}')
    lds_nonce('v2', 6)
    A.label(labn)
    lp0 = uid('LNA')
    flag = S_CNT + 16 + 4 * _fl[0]; _fl[0] += 1
    A(f'''v_mov_b32 v2, {flag}
s_cmp_lg_u32 s3, 4
s_cbranch_scc1 {lp0}_w
v_min_u32 v3, 55, v1
v_lshlrev_b32 v3, 7, v3''')
    A.label(lp0)
    for c in range(4):
        A(f's_mov_b32 s84, {56*128*c}\nbuffer_load_dwordx2 v[{8+2*c}:{9+2*c}], v3, {srd(R_FLG)}, s84 offen sc0 sc1')
    A('s_waitcnt vmcnt(0)\ns_mov_b64 s[14:15], -1')
    for c in range(4):
        A(f'''v_cmp_eq_u32 vcc, s12, v{8+2*c}
s_and_b64 s[14:15], s[14:15], vcc
v_cmp_eq_u32 vcc, s13, v{9+2*c}
s_and_b64 s[14:15], s[14:15], vcc''')
    A(f'''s_cmp_eq_u64 s[14:15], -1
s_cbranch_scc1 {lp0}_ok
s_sleep 2
s_branch {lp0}''')
    A.label(lp0 + '_ok')
    A(f'v_mov_b32 v6, 1\nds_write_b32 v2, v6\ns_branch {lp0}_done')
    A.label(lp0 + '_w')
    A(f'''ds_read_b32 v6, v2
s_waitcnt lgkmcnt(0)
v_readfirstlane_b32 s84, v6
s_cmp_eq_u32 s84, 1
s_cbranch_scc1 {lp0}_done
s_sleep 1
s_branch {lp0}_w''')
    A.label(lp0 + '_done')
    stamp(5)
    A(f'''s_lshl_b32 s84, s85, 12
s_add_u32 s84, s84, {AT_OFF}''')
    mk_srd(R_B, S_WS, 's84', 4096)
    A(f'''s_lshr_b32 s84, s87, 1
s_mul_i32 s91, s84, 8448
s_add_u32 s91, s91, {S_U}
s_lshl_b32 s90, s86, 11
s_add_u32 s90, s90, s91
s_lshl_b32 s84, s86, 7
v_add_u32 v8, s84, v1
v_mul_u32_u24 v8, 7168, v8
s_lshl_b32 s84, s85, 4
v_add_u32 v8, s84, v8
v_mov_b32 v9, 0''')
    for i in range(2):
        A(f's_add_u32 m0, s90, {64 + 1024*i}\ns_mov_b32 s84, {64*7168*i}\nbuffer_load_dwordx4 v8, {srd(R_XNT)}, s84 offen sc1 lds')
    A(f'''v_and_b32 v10, 15, v1
v_lshlrev_b32 v10, 2, v10
s_mul_i32 s84, s86, 4160
s_add_u32 s84, s84, s91
v_add_u32 v10, s84, v10
ds_write_b32 v10, v9
ds_write_b32 v10, v9 offset:4224
s_waitcnt vmcnt(0)''')
    lds_sync('s89', 6, 'v12', 'v13')
    A(f'''s_lshl_b32 s84, s86, 11
s_add_u32 s84, s84, s91
s_add_u32 s84, s84, 48
v_lshlrev_b32 v10, 4, v1
v_add_u32 v10, s84, v10''')
    for i in range(3):
        A(f'ds_read_b128 v[{16+8*i}:{19+8*i}], v10 offset:{1024*i}\nds_read_b32 v{20+8*i}, v10 offset:{1024*i+16}')
    A('s_waitcnt lgkmcnt(0)')
    for i in range(3):
        b = 16 + 8 * i
        for k in range(4):
            A(f'v_alignbit_b32 v{b+k}, v{b+k+1}, v{b+k}, 16')
        if i == 2:
            A(f'v_cmp_gt_u32 vcc, 2, v1\ns_and_saveexec_b64 s[92:93], vcc')
        A(f'ds_write_b128 v10, v[{b}:{b+3}] offset:{1024*i+4224}')
        if i == 2:
            A('s_mov_b64 exec, s[92:93]')
    lds_sync('s89', 8, 'v12', 'v13')
    A(f'''s_lshr_b32 s84, s87, 1
s_mul_i32 s84, s84, {2*KRSZ}
s_mul_i32 s90, s86, {KRSZ}
s_add_u32 s84, s84, s90
s_add_u32 s84, s84, {S_KREV + 480}
v_and_b32 v4, 15, v1
v_lshrrev_b32 v5, 4, v1
v_lshlrev_b32 v6, 5, v4
v_lshlrev_b32 v7, 4, v5
v_sub_u32 v3, v7, v6
v_add_u32 v3, s84, v3
v_lshl_add_u32 v2, v4, 1, v7
v_and_b32 v6, 1, v4
v_xor_b32 v6, 1, v6
v_mul_u32_u24 v6, 4222, v6
v_add_u32 v2, v2, v6
s_add_u32 s84, s91, 2
v_add_u32 v2, s84, v2''')
    for i in range(32): A(f'v_accvgpr_write_b32 a{i}, 0')
    SETS = [('v', 32), ('a', 32)]
    def fr(st, kind, idx, lo=0, n=4):
        p, b = SETS[st]
        r0 = b + kind * 32 + idx * 4 + lo
        return f'{p}[{r0}:{r0+n-1}]'
    def loads(r, st):
        out = []
        for a2 in range(4):
            out.append(f'v_add_u32 v{8+a2}, {64*r + 1024*a2}, v2')
        for a in range(8):
            o = 128 * (a & 1)
            out.append(f'ds_read2_b32 {fr(st,0,a,0,2)}, v{8+(a>>1)} offset0:{o} offset1:{o+1}')
            out.append(f'ds_read2_b32 {fr(st,0,a,2,2)}, v{8+(a>>1)} offset0:{o+2} offset1:{o+3}')
            out.append(f'ds_read_b128 {fr(st,1,a)}, v3 offset:{512*(7-a) + 64*r}')
        return out
    def acc(q): return f'a[{4*q}:{4*q+3}]'
    A(f'''v_add_u32 v8, 4096, v2
ds_read2_b32 v[12:13], v8 offset0:0 offset1:1
ds_read2_b32 v[14:15], v8 offset0:2 offset1:3
ds_read_b128 v[16:19], v3 offset:4096''')
    for x in loads(0, 0): A(x)
    import gen_g
    for r in range(8):
        st = r & 1
        A('s_waitcnt lgkmcnt(0)')
        mf = []
        for a in range(8):
            for b in range(8 - a):
                mf.append(f'v_mfma_f32_16x16x32_bf16 {acc(a+b)}, {fr(st,0,a)}, {fr(st,1,b)}, {acc(a+b)}')
        if r == 0:
            for a in range(1, 8):
                mf.append(f'v_mfma_f32_16x16x32_bf16 {acc(a-1)}, {fr(st,0,a)}, v[16:19], {acc(a-1)}')
            mf.append(f'v_mfma_f32_16x16x32_bf16 {acc(7)}, v[12:15], v[16:19], {acc(7)}')
        gen_g.weave(A, mf, loads(r + 1, 1 - st) if r < 7 else [], gaps=28)
    stamp(6)
    A(f'''s_lshl_b32 s84, s87, 12
s_add_u32 s84, s84, {S_RED}
v_lshlrev_b32 v8, 4, v1
v_add_u32 v9, s84, v8
s_xor_b32 s84, s87, 1
s_lshl_b32 s84, s84, 12
s_add_u32 s84, s84, {S_RED}
v_add_u32 v10, s84, v8
s_cmp_eq_u32 s86, 0
s_cselect_b64 vcc, -1, 0''')
    for i in range(16):
        A(f'''v_accvgpr_read_b32 v{64+i}, a{i}
v_accvgpr_read_b32 v{80+i}, a{16+i}''')
    for i in range(16):
        A(f'''v_cndmask_b32 v{32+i}, v{64+i}, v{80+i}, vcc
v_cndmask_b32 v{48+i}, v{80+i}, v{64+i}, vcc''')
    for q in range(4):
        A(f'ds_write_b128 v9, v[{32+4*q}:{35+4*q}] offset:{1024*q}')
    A(f'''v_lshlrev_b32 v11, 3, v5
v_lshl_add_u32 v11, v4, 5, v11
s_lshl_b32 s84, s86, 11
v_add_u32 v11, s84, v11
s_add_u32 s84, s91, 64
v_add_u32 v14, s84, v11''')
    for q in range(4):
        A(f'ds_read_b64 v[{64+2*q}:{65+2*q}], v14 offset:{512*q}')
    lds_sync('s89', 10, 'v12', 'v13')
    for q in range(4):
        A(f'ds_read_b128 v[{32+4*q}:{35+4*q}], v10 offset:{1024*q}')
    A('s_waitcnt vmcnt(0) lgkmcnt(0)')
    for q in range(4):
        for h in range(2):
            y0, y1 = f'v{48+4*q+2*h}', f'v{49+4*q+2*h}'
            p0, p1 = f'v{32+4*q+2*h}', f'v{33+4*q+2*h}'
            u = f'v{64+2*q+h}'
            A(f'''v_add_f32 {y0}, {y0}, {p0}
v_add_f32 {y1}, {y1}, {p1}
v_cvt_pk_bf16_f32 {y0}, {y0}, {y1}
v_lshlrev_b32 {p0}, 16, {u}
v_and_b32 {p1}, 0xffff0000, {u}
v_mul_f32 {p0}, {p0}, v99
v_mul_f32 {p1}, {p1}, v99
v_cvt_pk_bf16_f32 {p0}, {p0}, {p1}
v_lshlrev_b32 {y1}, 16, {y0}
v_and_b32 {y0}, 0xffff0000, {y0}
v_lshlrev_b32 {p1}, 16, {p0}
v_and_b32 {p0}, 0xffff0000, {p0}
v_add_f32 {y1}, {y1}, {p1}
v_add_f32 {y0}, {y0}, {p0}
v_cvt_pk_bf16_f32 {u}, {y1}, {y0}''')
        A(f'buffer_store_dwordx2 v[{64+2*q}:{65+2*q}], v11, {srd(R_B)}, 0 offen offset:{512*q} sc1')
    lds_nonce('v12', 14)
    lab = uid('ASIG')
    A(f'''s_waitcnt vmcnt(0)
v_mov_b32 v12, {C_S2}
v_mov_b32 v13, 1
s_mov_b64 exec, 1
ds_add_rtn_u32 v13, v12, v13
s_mov_b64 exec, -1
s_waitcnt lgkmcnt(0)
v_readfirstlane_b32 s84, v13
s_cmp_lg_u32 s84, 3
s_cbranch_scc1 {lab}''')
    flag_set(2, 'v3', 4)
    A.label(lab)

def build(with_g=True):
    import gen_g
    G = sys.modules[__name__]
    prologue()
    vm = gen_g.VM(A)
    A('s_cmp_lt_u32 s3, 4\ns_cbranch_scc1 L_GPATH')
    ln_loads(True)
    A('s_waitcnt lgkmcnt(0)\ns_barrier')
    if SPRIO: A(f's_setprio {SPRIO}')
    stamp(0)
    s_param_loads()
    labn0 = uid('NS')
    A(f's_cmp_lg_u32 s3, 5\ns_cbranch_scc1 {labn0}')
    get_nonce('v60', 62)
    A(f'v_mov_b32 v60, {C_NONCE}\nds_write_b64 v60, v[62:63]')
    A.label(labn0)
    ln_extra()
    kgen()
    stamp(4)
    conv()
    stamp(7)
    A('s_branch L_END')
    A.label('L_GPATH')
    ln_loads(False)
    gen_g.g_early(G)
    for st in range(3): gen_g.w_dma(G, vm, st)
    A('s_waitcnt lgkmcnt(0)\ns_barrier')
    if GPRIO: A(f's_setprio {GPRIO}')
    stamp(0)
    ln_stage()
    stamp(1)
    vm.drain()
    gen_g.gemm1(G, vm)
    gen_g.gemm2(G, vm)
    flush2()
    A.label('L_END')
    A('s_endpgm')
    A.pad()
    hdr = f'''; fused LN + S4 conv + bilinear GLU kernel (generated by dev/gen.py)
; @launch grid=({NWG},1,1) block=(512,1,1) lds={LDS_SZ + (1024 if PROF else 0)}
.amdgcn_target "amdgcn-amd-amdhsa--gfx950"
.text
.globl {KN}
.p2align 8
.type {KN},@function
{KN}:
'''
    ftr = f'''.section .rodata,"a"
.p2align 6
.amdhsa_kernel {KN}
  .amdhsa_next_free_vgpr 256
  .amdhsa_next_free_sgpr 102
  .amdhsa_accum_offset 128
  .amdhsa_group_segment_fixed_size 0
  .amdhsa_kernarg_size 128
  .amdhsa_user_sgpr_count 2
  .amdhsa_user_sgpr_kernarg_segment_ptr 1
  .amdhsa_system_sgpr_workgroup_id_x 1
.end_amdhsa_kernel
'''
    return hdr + A.text() + ftr

if __name__ == '__main__':
    out = sys.argv[1]
    with_g = 'nog' not in sys.argv[2:]
    PROF = 'prof' in sys.argv[2:]
    for a in sys.argv[2:]:
        if a.startswith('sleep='): POLL_SLEEP = int(a[6:])
        if a == 'nopf': PREFETCH = False
        if a == 'pf': PREFETCH = 1
        if a == 'pfb': PREFETCH = 2
        if a.startswith('sdelay='): SDELAY = int(a[7:])
        if a == 'pf2': PF2 = True
        if a.startswith('codepf='): CODEPF = int(a[7:])
        if a.startswith('gprio='): GPRIO = int(a[6:])
        if a.startswith('sprio='): SPRIO = int(a[6:])
    open(out, 'w').write(build(with_g))
```

```python
from gen_g_v3 import VM, weave

XS = 49152

def g_early(G):
    A = G.A
    A(f'''s_and_b32 s80, s2, 7
s_lshr_b32 s81, s2, 3
s_mul_i32 s82, s81, 37
s_lshr_b32 s82, s82, 8
s_mul_i32 s83, s82, 7
s_sub_u32 s83, s81, s83
s_lshr_b32 s84, s80, 1
s_lshl_b32 s85, s84, 2
s_add_u32 s85, s85, s82
s_and_b32 s84, s80, 1
s_mul_i32 s86, s84, 7
s_add_u32 s86, s86, s83
s_lshl_b32 s87, s80, 2
s_add_u32 s87, s87, s82
s_mov_b32 s88, s83
s_cmp_lt_u32 s3, 2
s_cselect_b32 s{G.R_A}, s{G.S_WG}, s{G.S_WU}
s_cselect_b32 s{G.R_A+1}, s{G.S_WG+1}, s{G.S_WU+1}
s_mov_b32 s{G.R_A+2}, {448*3584}
s_mov_b32 s{G.R_A+3}, 0x00020000''')
    A(f'''v_lshrrev_b32 v26, 3, v1
v_and_b32 v27, 7, v1
v_lshrrev_b32 v28, 1, v27
v_bfe_u32 v29, v1, 4, 1
v_lshlrev_b32 v29, 1, v29
v_xor_b32 v28, v28, v29
v_and_b32 v27, 1, v27
v_lshl_add_u32 v28, v28, 1, v27
v_lshlrev_b32 v28, 4, v28
v_mul_u32_u24 v26, 3584, v26
v_add_u32 v30, v26, v28
s_lshl_b32 s80, s86, 8
s_and_b32 s81, s3, 1
s_mul_i32 s81, s81, {32*3584}
s_add_u32 s80, s80, s81
v_add_u32 v30, s80, v30
s_lshl_b32 s89, s3, 12''')

def w_dma_list(G, vm, gs, vo):
    A = G.A
    p, st = divmod(gs, 7)
    out = []
    for i in range(4):
        def f(i=i):
            A(f's_add_u32 m0, s89, {G.G_RING + (gs%3)*16384 + i*1024}\ns_mov_b32 s80, {(64*st + 8*i)*3584 + 128*p}')
            vm.issue(('W', gs), f'buffer_load_dwordx4 {vo}, {G.srd(G.R_A)}, s80 offen lds')
        out.append(f)
    return out

def w_dma(G, vm, gs, vo='v30'):
    for f in w_dma_list(G, vm, gs, vo): f()

def prod_idx(G, dst, tmp):
    G.A(f'''s_lshr_b32 s80, s87, 1
s_and_b32 s81, s80, 3
s_lshr_b32 s80, s80, 2
s_mul_i32 s81, s81, 56
s_lshl_b32 s80, s80, 1
s_add_u32 s80, s80, s81
s_add_u32 s80, s80, 256
v_lshrrev_b32 {dst}, 1, v1
v_lshlrev_b32 {dst}, 3, {dst}
v_and_b32 {tmp}, 1, v1
v_add_u32 {dst}, {dst}, {tmp}
v_add_u32 {dst}, s80, {dst}
v_mov_b32 {tmp}, 2000
v_cmp_gt_u32 vcc, 14, v1
v_cndmask_b32 {dst}, {tmp}, {dst}, vcc''')

def gemm1(G, vm):
    A = G.A
    def setup():
        A(f'''s_lshl_b32 s80, s85, 4
v_add_u32 v3, s80, v1
v_mov_b32 v6, 2000
v_cmp_gt_u32 vcc, 16, v1
v_cndmask_b32 v3, v6, v3, vcc''')
    G.flag_wait([setup], 'v3', 6, 'v2')
    G.stamp(2)
    A(f'''v_mov_b32 v2, v30
s_lshl_b32 s80, s85, 7
s_lshl_b32 s81, s3, 5
s_add_u32 s80, s80, s81
v_lshrrev_b32 v12, 3, v1
v_add_u32 v13, s80, v12
v_mul_u32_u24 v13, 896, v13
v_lshrrev_b32 v12, 4, v1
v_and_b32 v14, 7, v1
v_xor_b32 v12, v12, v14
v_lshl_add_u32 v3, v12, 4, v13
v_xor_b32 v12, 4, v12
v_lshl_add_u32 v4, v12, 4, v13''')
    def x_dma_list(gs):
        st = gs % 7
        out = []
        for i in range(4):
            def f(i=i):
                A(f's_add_u32 m0, s89, {G.G_RING + XS + (gs%3)*16384 + i*1024}\ns_mov_b32 s80, {8*i*896 + 128*st}')
                vm.issue(('X', gs), f'buffer_load_dwordx4 {"v3" if i % 2 == 0 else "v4"}, {G.srd(G.R_XN)}, s80 offen sc1 lds')
            out.append(f)
        return out
    for gs in range(3):
        for f in x_dma_list(gs): f()
    A(f'''v_mov_b32 v12, {G.C_NONCE}
ds_read_b64 v[14:15], v12
s_waitcnt lgkmcnt(0)
v_readfirstlane_b32 s12, v14
v_readfirstlane_b32 s13, v15''')
    A(f'''v_lshrrev_b32 v12, 4, v1
v_and_b32 v13, 15, v1
v_lshrrev_b32 v14, 2, v13
v_and_b32 v13, 3, v13
v_lshrrev_b32 v15, 1, v12
v_and_b32 v12, 1, v12
v_lshl_add_u32 v15, v15, 3, v14
v_lshlrev_b32 v15, 7, v15
v_lshl_add_u32 v15, v13, 3, v15
v_lshl_add_u32 v15, v12, 5, v15
v_lshrrev_b32 v14, 1, v14
s_and_b32 s80, s3, 1
v_xor_b32 v14, s80, v14
v_lshl_add_u32 v5, v14, 6, v15
v_add_u32 v5, {G.G_RING}, v5
v_and_b32 v12, 31, v1
v_lshrrev_b32 v13, 5, v1
v_bfe_u32 v14, v1, 1, 3
v_xor_b32 v13, v13, v14
v_lshlrev_b32 v12, 7, v12
s_lshr_b32 s80, s3, 1
s_lshl_b32 s80, s80, 13
s_add_u32 s80, s80, {G.G_RING + XS}
v_add_u32 v12, s80, v12''')
    for s in range(4):
        A(f'v_xor_b32 v14, {2*s}, v13\nv_lshl_add_u32 v{6+s}, v14, 4, v12')
    for i in range(128): A(f'v_accvgpr_write_b32 a{i}, 0')
    FR = [16, 32]
    def reads(gs, s, buf):
        r = FR[buf]
        sl = (gs % 3) * 16384
        out = []
        for m in range(2):
            off = sl + m * 8192 + s * 2048
            out.append(f'ds_read_b64_tr_b16 v[{r+4*m}:{r+4*m+1}], v5 offset:{off}')
            out.append(f'ds_read_b64_tr_b16 v[{r+4*m+2}:{r+4*m+3}], v5 offset:{off+512}')
        for tt in range(2):
            out.append(f'ds_read_b128 v[{r+8+4*tt}:{r+11+4*tt}], v{6+s} offset:{sl + tt*4096}')
        return out
    nbar = [0]
    def arrive():
        nbar[0] += 1
        A(f'''v_mov_b32 v14, {G.C_G}
v_mov_b32 v15, 1
s_mov_b64 exec, 1
ds_add_u32 v14, v15
s_mov_b64 exec, -1''')
    def poll():
        lp = G.uid('GB')
        A.label(lp)
        A(f'''ds_read_b32 v15, v14
s_waitcnt lgkmcnt(0)
v_readfirstlane_b32 s84, v15
s_cmp_ge_u32 s84, {4 * (G.cg_base + nbar[0])}
s_cbranch_scc0 {lp}''')
    G.mk_srd(G.R_C, G.S_WS, G.H_OFF, G.H_SZ)
    A(f'''s_mul_i32 s90, s3, 2560
s_add_u32 s90, s90, {G.H_STG}
v_and_b32 v12, 31, v1
v_mul_u32_u24 v12, 80, v12
v_lshrrev_b32 v13, 5, v1
v_lshl_add_u32 v12, v13, 3, v12
v_add_u32 v10, s90, v12
v_lshrrev_b32 v12, 2, v1
v_mul_u32_u24 v12, 80, v12
v_and_b32 v13, 3, v1
v_lshl_add_u32 v12, v13, 4, v12
v_add_u32 v11, s90, v12
s_mul_i32 s80, s85, 14
s_add_u32 s80, s80, s86
s_lshl_b32 s80, s80, 15
s_and_b32 s81, s3, 1
s_lshl_b32 s81, s81, 13
s_add_u32 s80, s80, s81
s_lshr_b32 s81, s3, 1
s_lshl_b32 s81, s81, 12
s_add_u32 s80, s80, s81
v_lshlrev_b32 v12, 4, v1
v_add_u32 v48, s80, v12''')
    def epi_list(p, tt):
        out = []
        base = 64 * p
        for q in range(4):
            for h in range(2):
                g0 = base + tt * 16 + 4 * q + 2 * h; u0 = g0 + 32
                t = 52 + 8 * h
                out += [f'v_accvgpr_read_b32 v{t}, a{g0}', f'v_accvgpr_read_b32 v{t+1}, a{g0+1}',
                        f'v_accvgpr_read_b32 v{t+2}, a{u0}', f'v_accvgpr_read_b32 v{t+3}, a{u0+1}',
                        f'v_cvt_pk_bf16_f32 v{t}, v{t}, v{t+1}', f'v_cvt_pk_bf16_f32 v{t+2}, v{t+2}, v{t+3}',
                        f'v_lshlrev_b32 v{t+4}, 16, v{t}', f'v_and_b32 v{t+5}, 0xffff0000, v{t}',
                        f'v_lshlrev_b32 v{t+6}, 16, v{t+2}', f'v_and_b32 v{t+7}, 0xffff0000, v{t+2}',
                        f'v_mul_f32 v{t+4}, v{t+4}, v{t+6}', f'v_mul_f32 v{t+5}, v{t+5}, v{t+7}',
                        f'v_cvt_pk_bf16_f32 v{50+h}, v{t+4}, v{t+5}']
            out.append(f'ds_write_b64 v10, v[50:51] offset:{16*q}')
        return out
    def epi_store(p, tt):
        A('s_waitcnt lgkmcnt(0)')
        for it in range(2):
            A(f'ds_read_b128 v[{68+8*tt+4*it}:{71+8*tt+4*it}], v11 offset:{it*16*80}')
        A('s_waitcnt lgkmcnt(0)')
        for it in range(2):
            A(f's_mov_b32 s81, {p*16384 + tt*2048 + it*1024}')
            vm.issue(('HS', p), f'buffer_store_dwordx4 v[{68+8*tt+4*it}:{71+8*tt+4*it}], v48, {G.srd(G.R_C)}, s81 offen sc1')
    def publish(p, cnt):
        lab = G.uid('HS')
        A(f'''v_mov_b32 v14, {cnt}
v_mov_b32 v15, 1
s_mov_b64 exec, 1
ds_add_rtn_u32 v15, v14, v15
s_mov_b64 exec, -1
s_waitcnt lgkmcnt(0)
v_readfirstlane_b32 s84, v15
s_cmp_lg_u32 s84, 3
s_cbranch_scc1 {lab}''')
        G.flag_set(1 + 2 * p, 'v14', 64)
        A.label(lab)
    vm.wait({('X', 0), ('W', 0)})
    arrive(); poll()
    for x in reads(0, 0, 0): A(x)
    buf = 0
    pend = []
    epi = []
    for gs in range(14):
        p = gs // 7
        for s in range(4):
            A('s_waitcnt lgkmcnt(0)')
            r = FR[buf]
            mf = []
            for m in range(2):
                for tt in range(2):
                    ac = 64 * p + m * 32 + tt * 16
                    mf.append(f'v_mfma_f32_32x32x16_bf16 a[{ac}:{ac+15}], v[{r+4*m}:{r+4*m+3}], v[{r+8+4*tt}:{r+11+4*tt}], a[{ac}:{ac+15}]')
            extra = []
            if epi:
                extra = epi[:28]; epi = epi[28:]
            if s < 3:
                fill = reads(gs, s + 1, 1 - buf) + pend[:3] + extra
                pend = pend[3:]
                weave(A, mf, fill, gaps=4)
                if gs == 8 and s == 0:
                    assert not epi
                    epi_store(0, 0)
                    epi = epi_list(0, 1)
                if gs == 9 and s == 1:
                    assert not epi
                    epi_store(0, 1)
                if gs == 11 and s == 0:
                    vm.wait({('HS', 0)})
                    publish(0, G.C_H0)
                if gs == 13 and s == 0:
                    prod_idx(G, 'v84', 'v85')
                    A('v_lshlrev_b32 v84, 7, v84')
                    vm.issue('fH', f'buffer_load_dwordx2 v[86:87], v84, {G.srd(G.R_FLG)}, 0 offen sc0 sc1')
            elif gs < 13:
                if gs < 6: G.stamp2(10 + 3 * gs)
                vm.wait({('X', gs + 1), ('W', gs + 1)})
                if gs < 6: G.stamp2(11 + 3 * gs)
                arrive()
                for x in mf[:2]: A(x)
                for x in extra: A(x)
                poll()
                if gs < 6: G.stamp2(12 + 3 * gs)
                fill = reads(gs + 1, 0, 1 - buf)
                if gs + 3 < 14:
                    pend = w_dma_list(G, vm, gs + 3, 'v2') + x_dma_list(gs + 3)
                weave(A, mf[2:], fill, gaps=2)
            else:
                for x in mf: A(x)
            buf = 1 - buf
        if gs == 6:
            epi = epi_list(0, 0)
    G.stamp(3)
    arrive()
    for tt in range(2):
        for x in epi_list(1, tt): A(x)
        epi_store(1, tt)
    A(f'v_mov_b32 v14, {G.C_G}')
    poll()
    G.cg_base += nbar[0]
    G.stamp(4)
    G.publish1 = lambda: (vm.wait({('HS', 1)}), publish(1, G.C_H1))

def gemm2(G, vm):
    A = G.A
    G.mk_srd(G.R_A, G.S_WD, 0, 1792 * 896)
    A(f'''s_mul_i32 s89, s3, 24576
s_add_u32 s89, s89, {G.G_RING}''')
    A(f'''v_lshrrev_b32 v2, 3, v1
v_and_b32 v3, 7, v1
v_lshrrev_b32 v4, 1, v3
v_bfe_u32 v5, v1, 4, 1
v_lshlrev_b32 v5, 1, v5
v_xor_b32 v4, v4, v5
v_and_b32 v3, 1, v3
v_lshl_add_u32 v4, v4, 1, v3
v_lshlrev_b32 v4, 4, v4
v_mul_u32_u24 v2, 896, v2
v_add_u32 v12, v2, v4
s_lshr_b32 s80, s3, 1
s_mul_i32 s80, s80, {896*896}
s_and_b32 s81, s3, 1
s_mul_i32 s81, s81, {32*896}
s_add_u32 s80, s80, s81
s_lshl_b32 s81, s88, 7
s_add_u32 s80, s80, s81
v_add_u32 v12, s80, v12''')
    A(f'''s_lshr_b32 s80, s87, 1
s_mul_i32 s80, s80, 14
s_lshr_b32 s81, s3, 1
s_mul_i32 s81, s81, 7
s_add_u32 s80, s80, s81
s_lshl_b32 s80, s80, 15
s_and_b32 s81, s3, 1
s_lshl_b32 s81, s81, 13
s_add_u32 s80, s80, s81
s_and_b32 s81, s87, 1
s_lshl_b32 s81, s81, 12
s_add_u32 s80, s80, s81
v_lshrrev_b32 v2, 2, v1
v_lshlrev_b32 v2, 6, v2
v_and_b32 v3, 3, v1
v_bfe_u32 v4, v1, 4, 2
v_xor_b32 v3, v3, v4
v_lshl_add_u32 v13, v3, 4, v2
v_add_u32 v13, s80, v13''')
    def wd_list(st):
        out = []
        for i in range(4):
            def f(i=i):
                A(f's_add_u32 m0, s89, {(st%3)*8192 + 4096 + i*1024}\ns_mov_b32 s80, {((st%7)*128 + (st//7)*64 + 8*i)*896}')
                vm.issue(('D', st), f'buffer_load_dwordx4 v12, {G.srd(G.R_A)}, s80 offen lds')
            out.append(f)
        return out
    def h_list(st):
        out = []
        for i in range(4):
            def f(i=i):
                A(f's_add_u32 m0, s89, {(st%3)*8192 + i*1024}\ns_mov_b32 s80, {(st%7)*32768 + (st//7)*16384 + i*1024}')
                vm.issue(('H', st), f'buffer_load_dwordx4 v13, {G.srd(G.R_C)}, s80 offen sc1 lds')
            out.append(f)
        return out
    A(f'''v_cmp_le_u32 vcc, 14, v1
s_mov_b64 s[90:91], vcc
v_add_u32 v80, {2*256*128}, v84
s_lshl_b32 s80, s88, 5
s_add_u32 s80, s80, 512
v_add_u32 v81, s80, v1
v_lshlrev_b32 v81, 7, v81
v_cmp_le_u32 vcc, 32, v1
s_mov_b64 s[92:93], vcc''')
    def flag_block(voff, mask):
        lp = G.uid('FB')
        A.label(lp)
        A(f'''buffer_load_dwordx2 v[82:83], {voff}, {G.srd(G.R_FLG)}, 0 offen sc0 sc1
s_waitcnt vmcnt(0)
v_cmp_eq_u32 vcc, s12, v82
v_cmp_eq_u32 s[82:83], s13, v83
s_and_b64 vcc, vcc, s[82:83]
s_or_b64 vcc, vcc, {mask}
s_cmp_eq_u64 vcc, -1
s_cbranch_scc1 {lp}_ok
s_sleep 1
s_branch {lp}''')
        A.label(lp + '_ok')
    def flag_check(reg, mask, voff):
        lab = G.uid('FC')
        A(f'''v_cmp_eq_u32 vcc, s12, v{reg}
v_cmp_eq_u32 s[82:83], s13, v{reg+1}
s_and_b64 vcc, vcc, s[82:83]
s_or_b64 vcc, vcc, {mask}
s_cmp_eq_u64 vcc, -1
s_cbranch_scc1 {lab}''')
        flag_block(voff, mask)
        A.label(lab)
    for st in range(3):
        for f in wd_list(st): f()
    vm.wait({'fH'})
    flag_check(86, 's[90:91]', 'v84')
    G.stamp(5)
    for st in range(3):
        for f in h_list(st): f()
    A(f'''v_and_b32 v2, 31, v1
v_lshrrev_b32 v3, 5, v1
v_bfe_u32 v8, v1, 2, 2
v_xor_b32 v9, v3, v8
v_xor_b32 v10, 2, v9
v_lshlrev_b32 v2, 6, v2
v_lshl_add_u32 v4, v9, 4, v2
v_lshl_add_u32 v5, v10, 4, v2
v_add_u32 v4, s89, v4
v_add_u32 v5, s89, v5
v_lshrrev_b32 v2, 4, v1
v_and_b32 v3, 15, v1
v_lshrrev_b32 v8, 2, v3
v_and_b32 v3, 3, v3
v_lshrrev_b32 v9, 1, v2
v_and_b32 v2, 1, v2
v_lshl_add_u32 v9, v9, 3, v8
v_lshlrev_b32 v9, 7, v9
v_lshl_add_u32 v9, v3, 3, v9
v_lshl_add_u32 v9, v2, 5, v9
v_lshrrev_b32 v8, 1, v8
v_lshl_add_u32 v6, v8, 6, v9
v_xor_b32 v8, 1, v8
v_lshl_add_u32 v7, v8, 6, v9
v_add_u32 v6, s89, v6
v_add_u32 v7, s89, v7''')
    G.mk_srd(G.R_D, G.S_OUT, 0, G.XN_SZ)
    G.mk_srd(G.R_B, G.S_WS, G.AT_OFF, G.XN_SZ)
    A(f'''v_lshrrev_b32 v2, 2, v0
v_and_b32 v3, 3, v0
s_lshl_b32 s80, s87, 6
v_add_u32 v8, s80, v2
v_mul_u32_u24 v8, 896, v8
v_lshl_add_u32 v8, v3, 5, v8
s_lshl_b32 s80, s88, 7
v_add_u32 v88, s80, v8
s_lshl_b32 s80, s88, 6
s_lshl_b32 s81, s3, 4
s_add_u32 s80, s80, s81
v_lshrrev_b32 v8, 3, v1
v_add_u32 v8, s80, v8
v_lshlrev_b32 v8, 12, v8
v_and_b32 v9, 7, v1
v_lshl_add_u32 v8, v9, 4, v8
s_lshl_b32 s80, s87, 7
v_add_u32 v89, s80, v8''')
    for i in range(64): A(f'v_accvgpr_write_b32 a{i}, 0')
    FR = [16, 48]
    def reads(st, buf):
        base = (st % 3) * 8192
        out = []
        for sp in range(2):
            r = FR[buf] + sp * 16
            for dt in range(2):
                off = base + 4096 + sp * 2048
                out.append(f'ds_read_b64_tr_b16 v[{r+4*dt}:{r+4*dt+1}], v{6+dt} offset:{off}')
                out.append(f'ds_read_b64_tr_b16 v[{r+4*dt+2}:{r+4*dt+3}], v{6+dt} offset:{off+512}')
            for tt in range(2):
                out.append(f'ds_read_b128 v[{r+8+4*tt}:{r+11+4*tt}], v{4+sp} offset:{base + tt*2048}')
        return out
    G.publish1()
    vm.wait({('H', 0), ('D', 0)})
    for x in reads(0, 0): A(x)
    buf = 0
    for st in range(14):
        A('s_waitcnt lgkmcnt(0)')
        fill = []
        if st < 13:
            if st in (5, 6): G.stamp2(28 + 2 * (st - 5))
            vm.wait({('H', st + 1), ('D', st + 1)})
            if st in (5,): G.stamp2(29)
            fill += reads(st + 1, 1 - buf)
        if st == 2:
            vm.issue('fB', f'buffer_load_dwordx2 v[90:91], v80, {G.srd(G.R_FLG)}, 0 offen sc0 sc1')
        if st == 4:
            vm.wait({'fB'})
            flag_check(90, 's[90:91]', 'v80')
        if st == 9:
            vm.issue('fA', f'buffer_load_dwordx2 v[86:87], v81, {G.srd(G.R_FLG)}, 0 offen sc0 sc1')
            vm.issue('x', f'buffer_load_dwordx4 v[96:99], v88, {G.srd(G.R_X)}, 0 offen')
            vm.issue('x', f'buffer_load_dwordx4 v[100:103], v88, {G.srd(G.R_X)}, 0 offen offset:16')
        if st == 12:
            vm.wait({'fA'})
            flag_check(86, 's[92:93]', 'v81')
            vm.issue('at', f'buffer_load_dwordx4 v[104:107], v89, {G.srd(G.R_B)}, 0 offen sc1')
            A(f's_mov_b32 s80, {8*4096}')
            vm.issue('at', f'buffer_load_dwordx4 v[108:111], v89, {G.srd(G.R_B)}, s80 offen sc1')
        if st + 3 < 14:
            fill += [x for pr in zip(h_list(st + 3), wd_list(st + 3)) for x in pr]
        mf = []
        for sp in range(2):
            r = FR[buf] + sp * 16
            for dt in range(2):
                for tt in range(2):
                    ac = (dt * 2 + tt) * 16
                    mf.append(f'v_mfma_f32_32x32x16_bf16 a[{ac}:{ac+15}], v[{r+4*dt}:{r+4*dt+3}], v[{r+8+4*tt}:{r+11+4*tt}], a[{ac}:{ac+15}]')
        weave(A, mf, fill)
        buf = 1 - buf
    G.stamp(6)
    A(f'''v_and_b32 v2, 31, v1
v_mul_u32_u24 v2, 272, v2
v_lshrrev_b32 v3, 5, v1
v_lshl_add_u32 v2, v3, 4, v2
v_add_u32 v2, s89, v2
v_lshlrev_b32 v7, 4, v1
v_add_u32 v7, s89, v7''')
    for dt in range(2):
        for tt in range(2):
            ac = (dt * 2 + tt) * 16
            for q in range(4):
                A(f'ds_write_b128 v2, a[{ac+4*q}:{ac+4*q+3}] offset:{tt*32*272 + (32*dt + 8*q)*4}')
    A('''s_waitcnt vmcnt(0)
ds_write_b128 v7, v[104:107] offset:17408
ds_write_b128 v7, v[108:111] offset:18432''')
    G.cg_base += 1
    G.lds_sync(G.C_G, 4 * G.cg_base, 'v6', 'v7')
    G.stamp(7)
    A(f'''v_lshrrev_b32 v3, 2, v0
v_and_b32 v4, 3, v0
v_mul_u32_u24 v6, 272, v3
v_lshl_add_u32 v6, v4, 6, v6
v_add_u32 v6, {G.G_RING}, v6
v_mul_u32_u24 v7, 24576, v4
v_lshl_add_u32 v7, v3, 1, v7
v_add_u32 v7, {G.G_RING + 17408}, v7
v_add_u32 v24, 49152, v6''')
    for w in range(4):
        for c in range(4):
            r = 32 + w * 16 + c * 4
            if r >= 88: r += 24
            A(f'ds_read_b128 v[{r}:{r+3}], {"v6" if w < 2 else "v24"} offset:{(w&1)*24576 + c*16}')
    for e in range(16):
        A(f'ds_read_u16 v{8+e}, v7 offset:{e*128}')
    A('s_waitcnt lgkmcnt(0)')
    def R3(e): return 80 + e if e < 8 else 104 + e
    for e in range(16):
        A(f'''v_add_f32 v{32+e}, v{32+e}, v{48+e}
v_add_f32 v{64+e}, v{64+e}, v{R3(e)}''')
    for e in range(16):
        A(f'v_add_f32 v{32+e}, v{32+e}, v{64+e}')
    for p in range(8):
        e0, e1 = 2 * p, 2 * p + 1
        xr = 96 + p
        A(f'''v_cvt_pk_bf16_f32 v{32+e0}, v{32+e0}, v{32+e1}
v_lshlrev_b32 v{48+e0}, 16, v{xr}
v_and_b32 v{48+e1}, 0xffff0000, v{xr}
v_lshlrev_b32 v{8+e0}, 16, v{8+e0}
v_lshlrev_b32 v{8+e1}, 16, v{8+e1}
v_add_f32 v{48+e0}, v{48+e0}, v{8+e0}
v_add_f32 v{48+e1}, v{48+e1}, v{8+e1}
v_cvt_pk_bf16_f32 v{48+e0}, v{48+e0}, v{48+e1}
v_lshlrev_b32 v{64+e0}, 16, v{48+e0}
v_and_b32 v{64+e1}, 0xffff0000, v{48+e0}
v_and_b32 v{32+e1}, 0xffff0000, v{32+e0}
v_lshlrev_b32 v{32+e0}, 16, v{32+e0}
v_add_f32 v{64+e0}, v{64+e0}, v{32+e0}
v_add_f32 v{64+e1}, v{64+e1}, v{32+e1}
v_cvt_pk_bf16_f32 v{120+p}, v{64+e0}, v{64+e1}''')
    A(f'''buffer_store_dwordx4 v[120:123], v88, {G.srd(G.R_D)}, 0 offen
buffer_store_dwordx4 v[124:127], v88, {G.srd(G.R_D)}, 0 offen offset:16''')
    G.stamp(8)
```

```python
import sys, math, struct
sys.path.insert(0, 'dev')
from asmkit import Asm

KN = 'parallel_sum__ssm_conv_s4__glu_gated_bilinear__prompt_kernel'
NWG = 256
NROLE = 224

XN_OFF, XNT_OFF, H_OFF, AT_OFF, FLG_OFF = 0, 2 << 20, 4 << 20, 12 << 20, 16 << 20
FLG_SZ = 4 * 256 * 128
XN_SZ = 2048 * 448 * 2
H_SZ = 2048 * 1792 * 2
G_RING = 0
S_PAR = 98304
S_KQ = S_PAR + 10240
S_KC = S_KQ + 16384
S_KREV = S_PAR + 35328
KRSZ = 4640
S_CNT = S_KREV + 4 * KRSZ
LNB = G_RING + 65536
H_STG = S_CNT + 128
LDS_SZ = H_STG + 10240
S_RED = S_PAR
S_U = S_PAR + 16384
C_G, C_S, C_P0, C_P1 = S_CNT, S_CNT + 4, S_CNT + 8, S_CNT + 12
C_H0, C_H1, C_NONCE, C_L2, C_S2, C_L3 = S_CNT + 64, S_CNT + 68, S_CNT + 72, S_CNT + 80, S_CNT + 84, S_CNT + 88
cg_base = 0
D_A = 56

def f2u(x): return struct.unpack('<I', struct.pack('<f', x))[0]
LOG2E = f2u(1.4426950408889634)
INV2PI_HI = struct.unpack('<f', struct.pack('<f', 1 / (2 * math.pi)))[0]
INV2PI_LO = f2u(1 / (2 * math.pi) - INV2PI_HI)
INV2PI_HI = f2u(INV2PI_HI)

A = Asm()
_uid = [0]
def uid(p):
    _uid[0] += 1
    return f'{p}_{_uid[0]}'

S_UU, S_ARE, S_AIM, S_BRE, S_BIM, S_CRE, S_CIM, S_LDT = 16, 18, 20, 22, 24, 26, 28, 30
S_DSK, S_BX, S_WG, S_WU, S_WD, S_OUT, S_DBG, S_WS = 32, 34, 36, 38, 40, 42, 44, 46
R_X, R_XN, R_XNT, R_DBG, R_A, R_B, R_C, R_D = 48, 52, 56, 60, 64, 68, 72, 76
def srd(r): return f's[{r}:{r+3}]'

def mk_srd(r, base, off, size):
    if off == 0:
        A(f's_mov_b32 s{r}, s{base}\ns_mov_b32 s{r+1}, s{base+1}')
    else:
        A(f's_add_u32 s{r}, s{base}, {off}\ns_addc_u32 s{r+1}, s{base+1}, 0')
    A(f's_mov_b32 s{r+2}, {size}\ns_mov_b32 s{r+3}, 0x00020000')

def wave_sum(v, t, s0=80):
    A(f'''v_add_f32_dpp {t}, {v}, {v} quad_perm:[1,0,3,2] row_mask:0xf bank_mask:0xf
v_add_f32_dpp {v}, {t}, {t} quad_perm:[2,3,0,1] row_mask:0xf bank_mask:0xf
v_add_f32_dpp {t}, {v}, {v} row_half_mirror row_mask:0xf bank_mask:0xf
v_add_f32_dpp {v}, {t}, {t} row_mirror row_mask:0xf bank_mask:0xf
v_readlane_b32 s{s0}, {v}, 0
v_readlane_b32 s{s0+1}, {v}, 16
v_readlane_b32 s{s0+2}, {v}, 32
v_readlane_b32 s{s0+3}, {v}, 48
v_mov_b32 {v}, s{s0}
v_add_f32 {v}, s{s0+1}, {v}
v_add_f32 {v}, s{s0+2}, {v}
v_add_f32 {v}, s{s0+3}, {v}''')

def lds_sync(cnt_addr, target, vt, vone, st=84):
    lp = uid('SYNC')
    A(f'''s_waitcnt lgkmcnt(0)
v_mov_b32 {vt}, {cnt_addr}
v_mov_b32 {vone}, 1
s_mov_b64 exec, 1
ds_add_u32 {vt}, {vone}
s_mov_b64 exec, -1''')
    A.label(lp)
    A(f'''ds_read_b32 {vone}, {vt}
s_waitcnt lgkmcnt(0)
v_readfirstlane_b32 s{st}, {vone}
s_cmp_ge_u32 s{st}, {target}
s_cbranch_scc0 {lp}''')

def dbg_add(idx_sgpr_or_imm, vt, vone):
    if isinstance(idx_sgpr_or_imm, int):
        A(f'v_mov_b32 {vt}, {idx_sgpr_or_imm*4}')
    else:
        A(f'v_mov_b32 {vt}, {idx_sgpr_or_imm}')
    A(f'''v_mov_b32 {vone}, 1
s_mov_b64 exec, 1
buffer_atomic_add {vone}, {vt}, {srd(R_DBG)}, 0 offen sc1
s_mov_b64 exec, -1''')

_fl = [0]
POLL_SLEEP = 2
PREFETCH = 1
GPRIO = 3
SPRIO = 0
KLO = False
CODEPF = 0
SDELAY = 4
PF2 = False
R_FLG = 8
def get_nonce(vt, vv):
    lp = uid('NONCE')
    A(f'v_mov_b32 {vt}, 0')
    A.label(lp)
    A(f'''buffer_load_dwordx2 v[{vv}:{vv+1}], {vt}, {srd(R_DBG)}, 0 offen sc0 sc1
s_waitcnt vmcnt(0)
v_readfirstlane_b32 s12, v{vv}
v_readfirstlane_b32 s13, v{vv+1}
s_cmp_lg_u32 s12, 0
s_cbranch_scc1 {lp}_ok
s_sleep 4
s_branch {lp}''')
    A.label(lp + '_ok')

def lds_nonce(vt, vv):
    lp = uid('LNON')
    A(f'v_mov_b32 {vt}, {C_NONCE}')
    A.label(lp)
    A(f'''ds_read_b64 v[{vv}:{vv+1}], {vt}
s_waitcnt lgkmcnt(0)
v_readfirstlane_b32 s12, v{vv}
v_readfirstlane_b32 s13, v{vv+1}
s_cmp_lg_u32 s12, 0
s_cbranch_scc0 {lp}''')

def flag_wait(setups, vi, vv, vt, leader=0, st=84):
    lp0 = uid('POLL')
    flag = S_CNT + 16 + 4 * _fl[0]; _fl[0] += 1
    assert _fl[0] <= 12
    A(f'v_mov_b32 {vt}, {flag}')
    A(f's_cmp_lg_u32 s3, {leader}\ns_cbranch_scc1 {lp0}_w')
    for setup in setups:
        lp = uid('PL')
        setup()
        A(f'v_cmp_le_u32 vcc, {4*256}, {vi}\ns_mov_b64 s[14:15], vcc\nv_lshlrev_b32 {vi}, 7, {vi}')
        A.label(lp)
        A(f'''buffer_load_dwordx2 v[{vv}:{vv+1}], {vi}, {srd(R_FLG)}, 0 offen sc0 sc1
s_waitcnt vmcnt(0)
v_cmp_eq_u32 vcc, s12, v{vv}
v_cmp_eq_u32 s[82:83], s13, v{vv+1}
s_and_b64 vcc, vcc, s[82:83]
s_or_b64 vcc, vcc, s[14:15]
s_cmp_eq_u64 vcc, -1
s_cbranch_scc1 {lp}_ok
s_sleep {POLL_SLEEP}
s_branch {lp}''')
        A.label(lp + '_ok')
    A(f'v_mov_b32 v{vv}, 1\nds_write_b32 {vt}, v{vv}\ns_branch {lp0}_done')
    A.label(lp0 + '_w')
    A(f'''ds_read_b32 v{vv}, {vt}
s_waitcnt lgkmcnt(0)
v_readfirstlane_b32 s{st}, v{vv}
s_cmp_eq_u32 s{st}, 1
s_cbranch_scc1 {lp0}_done
s_sleep 1
s_branch {lp0}_w''')
    A.label(lp0 + '_done')

def flag_set(phase, vt, vv):
    A(f'''s_add_u32 s82, s2, {phase*256}
s_lshl_b32 s82, s82, 7
v_mov_b32 {vt}, s82
v_mov_b32 v{vv}, s12
v_mov_b32 v{vv+1}, s13
s_mov_b64 exec, 1
buffer_store_dwordx2 v[{vv}:{vv+1}], {vt}, {srd(R_FLG)}, 0 offen sc0 sc1
s_mov_b64 exec, -1''')

PROF = False
PROF_OFF = 32 << 20
def stamp(i):
    if not PROF: return
    A(f'''s_waitcnt lgkmcnt(0)
s_memrealtime s[94:95]
s_lshl_b32 s96, s2, 3
s_add_u32 s96, s96, s3
s_lshl_b32 s96, s96, 8
s_add_u32 s96, s96, {PROF_OFF + 8*i}
v_mov_b32 v25, s96
s_waitcnt lgkmcnt(0)
v_mov_b32 v26, s94
v_mov_b32 v27, s95
global_store_dwordx2 v25, v[26:27], s[{S_WS}:{S_WS+1}]''')

_st2 = []
def stamp2(i):
    if not PROF: return
    A(f'''s_memtime s[94:95]
s_lshl_b32 s96, s3, 8
s_add_u32 s96, s96, {LDS_SZ + 8*i}
v_mov_b32 v{60 if i < 10 else 12 if i < 28 else 14}, s96
s_waitcnt lgkmcnt(0)
v_mov_b32 v{61 if i < 10 else 13 if i < 28 else 15}, s94
ds_write_b32 v{60 if i < 10 else 12 if i < 28 else 14}, v{61 if i < 10 else 13 if i < 28 else 15}''')
    _st2.append(i)

def flush2():
    if not PROF: return
    A(f'''s_lshl_b32 s96, s3, 8
s_add_u32 s96, s96, {LDS_SZ}
v_lshlrev_b32 v14, 2, v1
v_add_u32 v15, s96, v14
ds_read_b32 v16, v15
s_lshl_b32 s96, s2, 3
s_add_u32 s96, s96, s3
s_lshl_b32 s96, s96, 8
s_add_u32 s96, s96, {PROF_OFF + (4<<20)}
v_add_u32 v14, s96, v14
s_waitcnt lgkmcnt(0)
global_store_dword v14, v16, s[{S_WS}:{S_WS+1}]''')

def prologue():
    A(f'''s_cmp_ge_u32 s2, {NWG}
s_cbranch_scc1 L_END
s_load_dwordx16 s[16:31], s[0:1], 0
s_load_dwordx16 s[32:47], s[0:1], 64
v_lshrrev_b32 v2, 6, v0
v_and_b32 v1, 63, v0
v_readfirstlane_b32 s3, v2
s_waitcnt lgkmcnt(0)''')
    if CODEPF:
        A(f'''s_getpc_b64 s[80:81]
s_and_b32 s80, s80, 0xffffff00
v_lshlrev_b32 v2, 7, v0
v_min_u32 v2, {CODEPF - 128}, v2
global_load_dword v127, v2, s[80:81]''')
    mk_srd(R_X, S_UU, 0, XN_SZ)
    mk_srd(R_XN, S_WS, XN_OFF, XN_SZ)
    mk_srd(R_XNT, S_WS, XNT_OFF, XN_SZ)
    mk_srd(R_DBG, S_DBG, 0, 256)
    mk_srd(R_FLG, S_WS, FLG_OFF, FLG_SZ)
    A(f'''s_mov_b32 s12, 0
s_mov_b32 s13, 0
s_cmp_lg_u32 s2, 0
s_cbranch_scc1 L_NONP
s_cmp_lg_u32 s3, 7
s_cbranch_scc1 L_NONP
s_memrealtime s[80:81]
s_waitcnt lgkmcnt(0)
s_or_b32 s80, s80, 1
v_mov_b32 v2, 0
v_mov_b32 v4, s80
v_mov_b32 v5, s81
s_mov_b64 exec, 1
buffer_store_dwordx2 v[4:5], v2, {srd(R_DBG)}, 0 offen sc0 sc1
s_mov_b64 exec, -1''')
    A.label('L_NONP')
    A(f'''v_mov_b32 v2, {S_CNT}
v_mov_b32 v4, 0
v_mov_b32 v5, 0
v_mov_b32 v6, 0
v_mov_b32 v7, 0
ds_write_b128 v2, v[4:7]
ds_write_b128 v2, v[4:7] offset:16
ds_write_b128 v2, v[4:7] offset:32
ds_write_b128 v2, v[4:7] offset:48
ds_write_b128 v2, v[4:7] offset:64
ds_write_b128 v2, v[4:7] offset:80''')

def ln_loads(extra):
    A(f'''s_lshl_b32 s80, s2, 3
s_and_b32 s81, s3, 3
s_lshl_b32 s81, s81, 1
s_add_u32 s80, s80, s81
s_add_u32 s80, s80, {1792 if extra else 0}
s_mul_i32 s81, s80, 896
v_lshlrev_b32 v2, 4, v1
v_add_u32 v2, s81, v2
v_mov_b32 v3, 0x7f000000
v_cmp_gt_u32 vcc, 56, v1
v_cndmask_b32 v2, v3, v2, vcc
buffer_load_dwordx4 v[4:7], v2, {srd(R_X)}, 0 offen
buffer_load_dwordx4 v[36:39], v2, {srd(R_X)}, 0 offen offset:896''')

def ln_prep(wait):
    A(f'''s_and_b32 s81, s3, 3
s_lshl_b32 s81, s81, 2
s_add_u32 s81, s81, {LNB}
v_mul_u32_u24 v3, 144, v1
v_add_u32 v3, s81, v3
v_cmp_gt_u32 vcc, 56, v1
v_mov_b32 v24, {f2u(1.0 / 448.0)}
v_mov_b32 v25, 0x43e00000
s_waitcnt vmcnt({wait})''')

def ln_extra():
    lab = uid('LNX')
    A(f's_cmp_ge_u32 s2, 32\ns_cbranch_scc1 {lab}')
    ln_prep(14)
    ln_rows((4, 36), '0', 9216)
    A(f'''s_waitcnt lgkmcnt(0)
v_mov_b32 v4, {C_L2}
v_mov_b32 v5, 1
s_mov_b64 exec, 1
ds_add_u32 v4, v5
s_mov_b64 exec, -1''')
    A.label(lab)

def ln_rows(srcs, soff, lnb_off):
    inv448 = f2u(1.0 / 448.0)
    for row in range(2):
        S = srcs[row]
        for i in range(4):
            A(f'v_lshlrev_b32 v{8+2*i}, 16, v{S+i}\nv_and_b32 v{9+2*i}, 0xffff0000, v{S+i}')
        A('''v_add_f32 v16, v8, v9
v_add_f32 v17, v10, v11
v_add_f32 v18, v12, v13
v_add_f32 v19, v14, v15
v_add_f32 v16, v16, v17
v_add_f32 v18, v18, v19
v_add_f32 v16, v16, v18''')
        wave_sum('v16', 'v17')
        A(f'''v_mul_f32 v17, v16, v24
v_fma_f32 v18, -v17, v25, v16
v_fma_f32 v17, v18, v24, v17''')
        A('v_mov_b32 v18, 0')
        for i in range(8):
            A(f'v_sub_f32 v19, v{8+i}, v17\nv_fmac_f32 v18, v19, v19')
        A('v_mov_b32 v19, 0\nv_cndmask_b32 v18, v19, v18, vcc')
        wave_sum('v18', 'v19')
        A(f'''v_mul_f32 v19, v18, v24
v_fma_f32 v20, -v19, v25, v18
v_fma_f32 v19, v20, v24, v19
v_cvt_pk_bf16_f32 v17, v17, v19
v_and_b32 v19, 0xffff0000, v17
v_lshlrev_b32 v17, 16, v17
v_add_f32 v19, {f2u(1e-5)}, v19
v_cvt_pk_bf16_f32 v19, v19, v19
v_lshlrev_b32 v19, 16, v19
v_sqrt_f32 v19, v19
v_cvt_pk_bf16_f32 v19, v19, v19
v_lshlrev_b32 v19, 16, v19
v_rcp_f32 v19, v19''')
        O = 20 if row == 0 else 40
        for i in range(4):
            A(f'''v_sub_f32 v{8+2*i}, v{8+2*i}, v17
v_sub_f32 v{9+2*i}, v{9+2*i}, v17
v_cvt_pk_bf16_f32 v{S+i}, v{8+2*i}, v{9+2*i}
v_lshlrev_b32 v{8+2*i}, 16, v{S+i}
v_and_b32 v{9+2*i}, 0xffff0000, v{S+i}
v_mul_f32 v{8+2*i}, v{8+2*i}, v19
v_mul_f32 v{9+2*i}, v{9+2*i}, v19
v_cvt_pk_bf16_f32 v{O+i}, v{8+2*i}, v{9+2*i}''')
        A(f'buffer_store_dwordx4 v[{O}:{O+3}], v2, {srd(R_XN)}, {soff} offen offset:{896*row} sc1')
        for i in range(4):
            A(f'ds_write_b16 v3, v{O+i} offset:{lnb_off+32*i+2*row}\nds_write_b16_d16_hi v3, v{O+i} offset:{lnb_off+32*i+16+2*row}')

def ln_stage():
    global cg_base
    ln_prep(12)
    stamp2(0)
    ln_rows((4, 36), '0', 0)
    stamp2(1)
    cg_base += 1
    lds_sync(C_G, 4 * cg_base, 'v4', 'v5')
    stamp2(3)
    A(f'''v_lshrrev_b32 v3, 3, v0
v_mul_u32_u24 v3, 144, v3
v_and_b32 v4, 7, v0
v_lshl_add_u32 v3, v4, 4, v3
v_add_u32 v3, {LNB}, v3
ds_read_b128 v[4:7], v3
ds_read_b128 v[8:11], v3 offset:4608
v_lshlrev_b32 v3, 4, v0
s_mul_i32 s81, s2, 7168
v_add_u32 v3, s81, v3
v_mov_b32 v20, 0x7f000000
v_cmp_gt_u32 vcc, 192, v0
v_add_u32 v21, 4096, v3
v_cndmask_b32 v21, v20, v21, vcc
s_waitcnt lgkmcnt(0)
buffer_store_dwordx4 v[4:7], v3, {srd(R_XNT)}, 0 offen sc1
buffer_store_dwordx4 v[8:11], v21, {srd(R_XNT)}, 0 offen sc1''')
    stamp2(4)
    A('s_waitcnt vmcnt(0)')
    stamp2(5)
    cg_base += 1
    lds_sync(C_G, 4 * cg_base, 'v4', 'v5')
    stamp2(6)
    lab = uid('LNSIG')
    A(f's_cmp_lg_u32 s3, 0\ns_cbranch_scc1 {lab}')
    lds_nonce('v4', 6)
    flag_set(0, 'v4', 6)
    A.label(lab)

ROWS_L = list(range(8)) + [256, 258, 260, 262, 512, 516, 768, 772, 1024, 1280, 1536, 1792, 2048]

def s_param_loads():
    A(f'''s_sub_u32 s87, s3, 4
s_lshr_b32 s85, s87, 1
s_lshl_b32 s84, s2, 1
s_add_u32 s85, s85, s84
s_and_b32 s86, s87, 1
s_lshl_b32 s84, s85, 9
s_lshl_b32 s88, s86, 8
s_add_u32 s84, s84, s88
v_lshlrev_b32 v98, 1, v1
v_add_u32 v98, s84, v98
s_lshl_b32 s84, s85, 1
v_mov_b32 v99, s84''')
    for k, b in enumerate((S_ARE, S_AIM, S_BRE, S_BIM, S_CRE, S_CIM)):
        A(f'global_load_ushort v{100+2*k}, v98, s[{b}:{b+1}]\nglobal_load_ushort v{101+2*k}, v98, s[{b}:{b+1}] offset:128')
    A(f'global_load_ushort v112, v99, s[{S_LDT}:{S_LDT+1}]\nglobal_load_ushort v113, v99, s[{S_DSK}:{S_DSK+1}]')

def interleave(streams):
    out = []
    n = max(len(s) for s in streams)
    for i in range(n):
        for s in streams:
            if i < len(s): out.append(s[i])
    return out

def l2_prefetch(which):
    A(f'''s_and_b32 s92, s2, 7
s_lshr_b32 s93, s2, 3
s_mul_i32 s94, s93, 37
s_lshr_b32 s94, s94, 8
s_mul_i32 s95, s94, 7
s_sub_u32 s95, s93, s95
s_and_b32 s96, s92, 1
s_mul_i32 s96, s96, 7
s_add_u32 s96, s96, s95''')
    if which == 0:
        A(f'''s_mul_i32 s97, s94, 112
s_mul_i32 s98, s87, 28
s_add_u32 s97, s97, s98
v_lshrrev_b32 v6, 1, v1
v_min_u32 v6, 27, v6
v_add_u32 v6, s97, v6
v_mul_u32_u24 v6, 3584, v6
v_and_b32 v7, 1, v1
v_lshl_add_u32 v6, v7, 7, v6
s_lshl_b32 s97, s96, 8
v_add_u32 v6, s97, v6
global_load_dword v96, v6, s[{S_WG}:{S_WG+1}]
global_load_dword v97, v6, s[{S_WU}:{S_WU+1}]''')
    else:
        A(f'''s_mul_i32 s97, s94, 448
s_mul_i32 s98, s87, 112
s_add_u32 s97, s97, s98
v_min_u32 v6, 55, v1
v_add_u32 v6, s97, v6
v_mul_u32_u24 v6, 896, v6
s_lshl_b32 s97, s95, 7
v_add_u32 v6, s97, v6
global_load_dword v98, v6, s[{S_WD}:{S_WD+1}]
v_add_u32 v6, {56*896}, v6
global_load_dword v100, v6, s[{S_WD}:{S_WD+1}]''')

def s_precompute():
    A(f'''s_lshr_b32 s84, s87, 1
s_lshl_b32 s84, s84, 12
s_add_u32 s84, s84, {S_KC}
s_cmp_eq_u32 s86, 0
s_cselect_b64 vcc, -1, 0
v_and_b32 v2, 31, v1
v_lshlrev_b32 v2, 3, v2
v_lshrrev_b32 v6, 5, v1
v_cmp_eq_u32 s[92:93], 0, v6''')
    BIG = 4096
    def lrow(r): return ROWS_L[r] if r < 21 else BIG
    for v in range(8):
        c = [[lrow(16 * nh + 8 * (v >> 2) + 4 * hf + (v & 3)) for hf in range(2)] for nh in range(2)]
        t = 32 + 4 * v
        A(f'''v_mov_b32 v{t}, {c[0][0]}
v_mov_b32 v{t+1}, {c[1][0]}
v_cndmask_b32 v{t}, v{t+1}, v{t}, vcc
v_mov_b32 v{t+1}, {c[0][1]}
v_mov_b32 v{t+2}, {c[1][1]}
v_cndmask_b32 v{t+1}, v{t+2}, v{t+1}, vcc
v_cndmask_b32 v{t}, v{t+1}, v{t}, s[92:93]
v_add_u32 v{t}, v{t}, v2
v_cvt_f32_u32 v{t+1}, v{t}
v_lshrrev_b32 v{t+1}, 16, v{t+1}
v_subrev_u32 v{t+1}, 17024, v{t+1}''')
    for v in range(8):
        t = 32 + 4 * v
        A(f'''v_cmp_gt_u32 vcc, 256, v{t}
v_cndmask_b32 v{t+1}, v{t+1}, v{t}, vcc
v_cmp_lt_u32 vcc, 2048, v{t}
v_mov_b32 v{t+2}, 1000
v_cndmask_b32 v{t+1}, v{t+1}, v{t+2}, vcc
v_lshlrev_b32 v{t+1}, 2, v{t+1}
v_add_u32 v{t+1}, s84, v{t+1}
v_accvgpr_write_b32 a{96+v}, v{t+1}''')
    A(f'''s_mul_i32 s91, s86, 1160
v_add_u32 v2, s91, v1
v_mov_b32 v6, 1001''')
    for it in range(19):
        t = 8 + 4 * (it % 6)
        A(f'''v_sub_u32 v{t}, {2063 - 64*it}, v2
v_cvt_f32_i32 v{t+1}, v{t}
v_cvt_pk_bf16_f32 v{t+1}, v{t+1}, v{t+1}
v_and_b32 v{t+1}, 0xffff, v{t+1}
v_subrev_u32 v{t+1}, 17024, v{t+1}
v_cmp_gt_u32 vcc, 256, v{t}
v_cndmask_b32 v{t+1}, v{t+1}, v{t}, vcc
v_cmp_gt_u32 vcc, 2048, v{t}
v_cndmask_b32 v{t+1}, v6, v{t+1}, vcc
v_lshlrev_b32 v{t+1}, 2, v{t+1}
v_add_u32 v{t+1}, s84, v{t+1}
v_accvgpr_write_b32 a{104+it}, v{t+1}''')
    A(f'''s_add_u32 s84, s84, 4004
v_mov_b32 v6, s84
v_mov_b32 v7, 0
ds_write_b32 v6, v7''')

def kgen():
    A(f'''s_waitcnt vmcnt(0)
v_mov_b32 v2, {C_L3}
v_mov_b32 v3, 1
s_mov_b64 exec, 1
ds_add_u32 v2, v3
s_mov_b64 exec, -1''')
    for k in range(14):
        A(f'v_lshlrev_b32 v{100+k}, 16, v{100+k}')
    A(f'''v_mov_b32 v2, {LOG2E}
v_mul_f32 v112, v112, v2
v_exp_f32 v112, v112
v_cvt_pk_bf16_f32 v112, v112, v112
v_lshlrev_b32 v112, 16, v112
s_mul_i32 s84, s87, 2560
s_add_u32 s84, s84, {S_PAR}
v_lshlrev_b32 v3, 2, v1
v_add_u32 v3, s84, v3
v_mov_b32 v4, {INV2PI_HI}
v_mov_b32 v5, {INV2PI_LO}''')
    for h in range(2):
        are, aim, bre, bim, cre, cim = [f'v{100+2*k+h}' for k in range(6)]
        A(f'''v_mul_f32 {are}, v112, {are}
v_mul_f32 {aim}, v112, {aim}
v_mul_f32 {bre}, v112, {bre}
v_mul_f32 {bim}, v112, {bim}
v_mul_f32 v6, {are}, v2
v_mul_f32 v7, {aim}, v4
v_fma_f32 v8, {aim}, v4, -v7
v_fma_f32 v8, {aim}, v5, v8
v_and_b32 v9, 0xffffff00, v7
v_sub_f32 v7, v7, v9
v_add_f32 v7, v7, v8
v_mul_f32 v10, {cre}, {bre}
v_fma_f32 v10, -{cim}, {bim}, v10
v_mul_f32 v11, {cre}, {bim}
v_fma_f32 v11, {cim}, {bre}, v11
ds_write_b32 v3, v6 offset:{256*h}
ds_write_b32 v3, v9 offset:{512+256*h}
ds_write_b32 v3, v7 offset:{1024+256*h}
ds_write_b32 v3, v10 offset:{1536+256*h}
ds_write_b32 v3, v11 offset:{2048+256*h}''')
    if PREFETCH == 1: l2_prefetch(0)
    s_precompute()
    A(f's_mul_i32 s84, s87, 2560\ns_add_u32 s84, s84, {S_PAR}')
    A('v_and_b32 v6, 31, v1\nv_mov_b32 v4, 0')
    for i, l in enumerate(ROWS_L):
        if l == 0: continue
        A(f'v_cmp_eq_u32 vcc, {i}, v6\nv_mov_b32 v7, {f2u(float(l))}\nv_cndmask_b32 v4, v4, v7, vcc')
    A(f'''v_lshlrev_b32 v5, 3, v6
v_cvt_f32_u32 v5, v5
v_lshrrev_b32 v3, 5, v1
v_lshlrev_b32 v3, 4, v3
v_add_u32 v3, s84, v3''')
    ACC = 112
    A('v_mov_b32 v99, v113')
    for i in range(16): A(f'v_mov_b32 v{ACC+i}, 0')
    P = [8, 28]
    def preads(pb):
        for k in range(5):
            A(f'ds_read_b128 v[{pb+4*k}:{pb+4*k+3}], v3 offset:{512*k}')
    if SDELAY:
        lpw = uid('SW')
        A(f'v_mov_b32 v6, {C_G}')
        A.label(lpw)
        A(f'''ds_read_b32 v7, v6
s_waitcnt lgkmcnt(0)
v_readfirstlane_b32 s88, v7
s_cmp_ge_u32 s88, {SDELAY}
s_cbranch_scc1 {lpw}_ok
s_sleep 2
s_branch {lpw}''')
        A.label(lpw + '_ok')
    if PREFETCH == 2: l2_prefetch(0)
    A('s_waitcnt lgkmcnt(0)')
    preads(P[0])
    A('s_mov_b32 s88, 0')
    loop = uid('KG')
    A.label(loop)
    for half in range(2):
        pb = P[half]; pn = P[1 - half]
        A('v_add_u32 v3, 32, v3')
        A('s_waitcnt lgkmcnt(0)')
        preads(pn)
        streams = []
        for e in range(4):
            for xy in range(2):
                t = 64 + (e * 2 + xy) * 4
                a, b, c, d = f'v{t}', f'v{t+1}', f'v{t+2}', f'v{t+3}'
                l = 'v4' if xy == 0 else 'v5'
                ar2, rh, rl, cr, ci = [f'v{pb+4*k+e}' for k in range(5)]
                hi = f'v{48+e}' if xy == 0 else f'v{56+e}'
                lo = f'v{52+e}' if xy == 0 else f'v{60+e}'
                s = [f'v_mul_f32 {b}, {rh}, {l}',
                     f'v_mul_f32 {a}, {ar2}, {l}',
                     f'v_fract_f32 {b}, {b}',
                     f'v_exp_f32 {a}, {a}',
                     f'v_fma_f32 {b}, {rl}, {l}, {b}',
                     f'v_cos_f32 {c}, {b}',
                     f'v_sin_f32 {d}, {b}']
                if xy == 0:
                    s += [f'v_mul_f32 {b}, {a}, {cr}',
                          f'v_mul_f32 {a}, {a}, {ci}',
                          f'v_mul_f32 {hi}, {b}, {c}',
                          f'v_mul_f32 {lo}, {b}, {d}',
                          f'v_fma_f32 {b}, -{a}, {d}, {hi}',
                          f'v_fma_f32 {a}, -{a}, {c}, -{lo}']
                    re_, im_ = b, a
                else:
                    s += [f'v_mul_f32 {b}, {a}, {c}',
                          f'v_mul_f32 {a}, {a}, {d}']
                    re_, im_ = b, a
                s += [f'v_cvt_pk_bf16_f32 {hi}, {re_}, {im_}']
                if KLO:
                    s += [f'v_lshlrev_b32 {c}, 16, {hi}',
                          f'v_and_b32 {d}, 0xffff0000, {hi}',
                          f'v_sub_f32 {re_}, {re_}, {c}',
                          f'v_sub_f32 {im_}, {im_}, {d}',
                          f'v_cvt_pk_bf16_f32 {lo}, {re_}, {im_}']
                streams.append(s)
        for x in interleave(streams): A(x)
        acc = f'v[{ACC}:{ACC+15}]'
        A(f'v_mfma_f32_32x32x16_bf16 {acc}, v[48:51], v[56:59], {acc}')
        if KLO:
            A(f'''v_mfma_f32_32x32x16_bf16 {acc}, v[48:51], v[60:63], {acc}
v_mfma_f32_32x32x16_bf16 {acc}, v[52:55], v[56:59], {acc}''')
    A(f'''s_add_u32 s88, s88, 1
s_cmp_lt_u32 s88, 8
s_cbranch_scc1 {loop}''')
    stamp(2)
    if PREFETCH: l2_prefetch(1)
    A(f'''s_lshl_b32 s84, s87, 12
s_add_u32 s84, s84, {S_KQ}
v_lshrrev_b32 v3, 5, v1
v_lshlrev_b32 v3, 9, v3
v_and_b32 v6, 31, v1
v_lshl_add_u32 v3, v6, 2, v3
v_add_u32 v6, s84, v3''')
    for v in range(16):
        A(f'ds_write_b32 v6, v{ACC+v} offset:{(8*(v>>2)+(v&3))*128}')
    A(f'''s_lshr_b32 s89, s87, 1
s_lshl_b32 s89, s89, 2
s_add_u32 s89, s89, {C_P0}''')
    lds_sync('s89', 2, 'v7', 'v8')
    A(f'''s_xor_b32 s84, s87, 1
s_lshl_b32 s84, s84, 12
s_add_u32 s84, s84, {S_KQ}
s_lshl_b32 s90, s86, 11
s_add_u32 s84, s84, s90
v_add_u32 v6, s84, v3
s_lshr_b32 s84, s87, 1
s_lshl_b32 s84, s84, 12
s_add_u32 s84, s84, {S_KC}''')
    for v in range(8):
        A(f'ds_read_b32 v{8+v}, v6 offset:{(8*(v>>2)+(v&3))*128}')
    A('s_cmp_eq_u32 s86, 0\ns_cselect_b64 vcc, -1, 0')
    for v in range(8):
        A(f'v_cndmask_b32 v{16+v}, v{ACC+8+v}, v{ACC+v}, vcc')
    for v in range(8):
        A(f'v_accvgpr_read_b32 v{33+4*v}, a{96+v}')
    A('s_waitcnt lgkmcnt(0)')
    for v in range(8):
        A(f'''v_add_f32 v{8+v}, v{8+v}, v{16+v}
v_cvt_pk_bf16_f32 v{8+v}, v{8+v}, v{8+v}
ds_write_b32 v{33+4*v}, v{8+v}''')
    lds_sync('s89', 4, 'v7', 'v8')
    stamp(3)
    NIT = 19
    A(f'''s_lshr_b32 s84, s87, 1
s_mul_i32 s90, s84, {2*KRSZ}
s_add_u32 s90, s90, {S_KREV}
s_mul_i32 s91, s86, 1160
v_add_u32 v2, s91, v1
v_lshlrev_b32 v3, 1, v2
v_add_u32 v3, s90, v3''')
    for it in range(NIT):
        A(f'v_accvgpr_read_b32 v{8+it}, a{104+it}')
    for it in range(NIT):
        A(f'ds_read_b32 v{32+it}, v{8+it}')
    for it in range(NIT):
        A(f's_waitcnt lgkmcnt({min(15, 2*it + NIT - 1 - it) if False else 0})' if it == 0 else '')
        if it == NIT - 1:
            A(f'v_cmp_gt_u32 vcc, {2320 - 64*(NIT-1)}, v2\ns_and_saveexec_b64 s[92:93], vcc')
        A(f'ds_write_b16 v3, v{32+it} offset:{128*it}')
        if it == NIT - 1:
            A('s_mov_b64 exec, s[92:93]')
    lds_sync(C_S, 4, 'v7', 'v8')

def conv():
    labn = uid('SN')
    A(f's_cmp_lg_u32 s3, 4\ns_cbranch_scc1 {labn}')
    lds_nonce('v2', 6)
    A.label(labn)
    lp0 = uid('LNA')
    flag = S_CNT + 16 + 4 * _fl[0]; _fl[0] += 1
    A(f'''v_mov_b32 v2, {flag}
s_cmp_lg_u32 s3, 4
s_cbranch_scc1 {lp0}_w
v_lshlrev_b32 v3, 7, v1''')
    A.label(lp0)
    for c in range(4):
        A(f's_mov_b32 s84, {64*128*c}\nbuffer_load_dwordx2 v[{8+2*c}:{9+2*c}], v3, {srd(R_FLG)}, s84 offen sc0 sc1')
    A('s_waitcnt vmcnt(0)\ns_mov_b64 s[14:15], -1')
    for c in range(4):
        A(f'''v_cmp_eq_u32 vcc, s12, v{8+2*c}
s_and_b64 s[14:15], s[14:15], vcc
v_cmp_eq_u32 vcc, s13, v{9+2*c}
s_and_b64 s[14:15], s[14:15], vcc''')
    A(f'''s_cmp_eq_u64 s[14:15], -1
s_cbranch_scc1 {lp0}_ok
s_sleep 2
s_branch {lp0}''')
    A.label(lp0 + '_ok')
    A(f'v_mov_b32 v6, 1\nds_write_b32 v2, v6\ns_branch {lp0}_done')
    A.label(lp0 + '_w')
    A(f'''ds_read_b32 v6, v2
s_waitcnt lgkmcnt(0)
v_readfirstlane_b32 s84, v6
s_cmp_eq_u32 s84, 1
s_cbranch_scc1 {lp0}_done
s_sleep 1
s_branch {lp0}_w''')
    A.label(lp0 + '_done')
    stamp(5)
    A(f'''s_lshl_b32 s84, s85, 12
s_add_u32 s84, s84, {AT_OFF}''')
    mk_srd(R_B, S_WS, 's84', 4096)
    A(f'''s_lshr_b32 s84, s87, 1
s_mul_i32 s91, s84, 8448
s_add_u32 s91, s91, {S_U}
s_lshl_b32 s90, s86, 11
s_add_u32 s90, s90, s91
s_lshl_b32 s84, s86, 7
v_add_u32 v8, s84, v1
v_mul_u32_u24 v8, 7168, v8
s_lshl_b32 s84, s85, 4
v_add_u32 v8, s84, v8
v_mov_b32 v9, 0''')
    for i in range(2):
        A(f's_add_u32 m0, s90, {64 + 1024*i}\ns_mov_b32 s84, {64*7168*i}\nbuffer_load_dwordx4 v8, {srd(R_XNT)}, s84 offen sc1 lds')
    A(f'''v_and_b32 v10, 15, v1
v_lshlrev_b32 v10, 2, v10
s_mul_i32 s84, s86, 4160
s_add_u32 s84, s84, s91
v_add_u32 v10, s84, v10
ds_write_b32 v10, v9
ds_write_b32 v10, v9 offset:4224
s_waitcnt vmcnt(0)''')
    lds_sync('s89', 6, 'v12', 'v13')
    A(f'''s_lshl_b32 s84, s86, 11
s_add_u32 s84, s84, s91
s_add_u32 s84, s84, 48
v_lshlrev_b32 v10, 4, v1
v_add_u32 v10, s84, v10''')
    for i in range(3):
        A(f'ds_read_b128 v[{16+8*i}:{19+8*i}], v10 offset:{1024*i}\nds_read_b32 v{20+8*i}, v10 offset:{1024*i+16}')
    A('s_waitcnt lgkmcnt(0)')
    for i in range(3):
        b = 16 + 8 * i
        for k in range(4):
            A(f'v_alignbit_b32 v{b+k}, v{b+k+1}, v{b+k}, 16')
        if i == 2:
            A(f'v_cmp_gt_u32 vcc, 2, v1\ns_and_saveexec_b64 s[92:93], vcc')
        A(f'ds_write_b128 v10, v[{b}:{b+3}] offset:{1024*i+4224}')
        if i == 2:
            A('s_mov_b64 exec, s[92:93]')
    lds_sync('s89', 8, 'v12', 'v13')
    A(f'''s_lshr_b32 s84, s87, 1
s_mul_i32 s84, s84, {2*KRSZ}
s_lshl_b32 s90, s86, 6
s_add_u32 s84, s84, s90
s_add_u32 s84, s84, {S_KREV + 480}
v_and_b32 v4, 15, v1
v_lshrrev_b32 v5, 4, v1
v_lshlrev_b32 v6, 5, v4
v_lshlrev_b32 v7, 4, v5
v_sub_u32 v3, v7, v6
v_add_u32 v3, s84, v3
v_lshl_add_u32 v2, v4, 1, v7
v_and_b32 v6, 1, v4
v_xor_b32 v6, 1, v6
v_mul_u32_u24 v6, 4222, v6
v_add_u32 v2, v2, v6
s_add_u32 s84, s91, 2
s_add_u32 s84, s84, s90
v_add_u32 v2, s84, v2''')
    for i in range(32): A(f'v_accvgpr_write_b32 a{i}, 0')
    SETS = [('v', 32), ('a', 32)]
    def fr(st, kind, idx, lo=0, n=4):
        p, b = SETS[st]
        r0 = b + kind * 32 + idx * 4 + lo
        return f'{p}[{r0}:{r0+n-1}]'
    def loads(i, st):
        r = 2 * i
        out = []
        for a2 in range(4):
            out.append(f'v_add_u32 v{8+a2}, {64*r + 1024*a2}, v2')
        for a in range(8):
            o = 128 * (a & 1)
            out.append(f'ds_read2_b32 {fr(st,0,a,0,2)}, v{8+(a>>1)} offset0:{o} offset1:{o+1}')
            out.append(f'ds_read2_b32 {fr(st,0,a,2,2)}, v{8+(a>>1)} offset0:{o+2} offset1:{o+3}')
            out.append(f'ds_read_b128 {fr(st,1,a)}, v3 offset:{512*(7-a) + 64*r}')
        return out
    def acc(q): return f'a[{4*q}:{4*q+3}]'
    A(f'''v_add_u32 v8, 4096, v2
v_subrev_u32 v8, s90, v8
v_subrev_u32 v9, s90, v3
ds_read2_b32 v[12:13], v8 offset0:0 offset1:1
ds_read2_b32 v[14:15], v8 offset0:2 offset1:3
ds_read_b128 v[16:19], v9 offset:4096''')
    for x in loads(0, 0): A(x)
    import gen_g
    for i in range(4):
        st = i & 1
        A('s_waitcnt lgkmcnt(0)')
        mf = []
        for a in range(8):
            for b in range(8 - a):
                mf.append(f'v_mfma_f32_16x16x32_bf16 {acc(a+b)}, {fr(st,0,a)}, {fr(st,1,b)}, {acc(a+b)}')
        gen_g.weave(A, mf, loads(i + 1, 1 - st) if i < 3 else [], gaps=28)
        if i == 0:
            labx = uid('CX')
            A(f's_cmp_lg_u32 s86, 0\ns_cbranch_scc1 {labx}')
            for a in range(1, 8):
                A(f'v_mfma_f32_16x16x32_bf16 {acc(a-1)}, {fr(st,0,a)}, v[16:19], {acc(a-1)}')
            A(f'v_mfma_f32_16x16x32_bf16 {acc(7)}, v[12:15], v[16:19], {acc(7)}')
            A.label(labx)
    stamp(6)
    A(f'''s_lshl_b32 s84, s87, 12
s_add_u32 s84, s84, {S_RED}
v_lshlrev_b32 v8, 4, v1
v_add_u32 v9, s84, v8
s_xor_b32 s84, s87, 1
s_lshl_b32 s84, s84, 12
s_add_u32 s84, s84, {S_RED}
v_add_u32 v10, s84, v8
s_cmp_eq_u32 s86, 0
s_cselect_b64 vcc, -1, 0''')
    for i in range(16):
        A(f'''v_accvgpr_read_b32 v{64+i}, a{i}
v_accvgpr_read_b32 v{80+i}, a{16+i}''')
    for i in range(16):
        A(f'''v_cndmask_b32 v{32+i}, v{64+i}, v{80+i}, vcc
v_cndmask_b32 v{48+i}, v{80+i}, v{64+i}, vcc''')
    for q in range(4):
        A(f'ds_write_b128 v9, v[{32+4*q}:{35+4*q}] offset:{1024*q}')
    A(f'''v_lshlrev_b32 v11, 3, v5
v_lshl_add_u32 v11, v4, 5, v11
s_lshl_b32 s84, s86, 11
v_add_u32 v11, s84, v11
s_add_u32 s84, s91, 64
v_add_u32 v14, s84, v11''')
    for q in range(4):
        A(f'ds_read_b64 v[{64+2*q}:{65+2*q}], v14 offset:{512*q}')
    lds_sync('s89', 10, 'v12', 'v13')
    for q in range(4):
        A(f'ds_read_b128 v[{32+4*q}:{35+4*q}], v10 offset:{1024*q}')
    A('s_waitcnt vmcnt(0) lgkmcnt(0)')
    for q in range(4):
        for h in range(2):
            y0, y1 = f'v{48+4*q+2*h}', f'v{49+4*q+2*h}'
            p0, p1 = f'v{32+4*q+2*h}', f'v{33+4*q+2*h}'
            u = f'v{64+2*q+h}'
            A(f'''v_add_f32 {y0}, {y0}, {p0}
v_add_f32 {y1}, {y1}, {p1}
v_cvt_pk_bf16_f32 {y0}, {y0}, {y1}
v_lshlrev_b32 {p0}, 16, {u}
v_and_b32 {p1}, 0xffff0000, {u}
v_mul_f32 {p0}, {p0}, v99
v_mul_f32 {p1}, {p1}, v99
v_cvt_pk_bf16_f32 {p0}, {p0}, {p1}
v_lshlrev_b32 {y1}, 16, {y0}
v_and_b32 {y0}, 0xffff0000, {y0}
v_lshlrev_b32 {p1}, 16, {p0}
v_and_b32 {p0}, 0xffff0000, {p0}
v_add_f32 {y1}, {y1}, {p1}
v_add_f32 {y0}, {y0}, {p0}
v_cvt_pk_bf16_f32 {u}, {y1}, {y0}''')
        A(f'buffer_store_dwordx2 v[{64+2*q}:{65+2*q}], v11, {srd(R_B)}, 0 offen offset:{512*q} sc1')
    lds_nonce('v12', 14)
    lab = uid('ASIG')
    A(f'''s_waitcnt vmcnt(0)
v_mov_b32 v12, {C_S2}
v_mov_b32 v13, 1
s_mov_b64 exec, 1
ds_add_rtn_u32 v13, v12, v13
s_mov_b64 exec, -1
s_waitcnt lgkmcnt(0)
v_readfirstlane_b32 s84, v13
s_cmp_lg_u32 s84, 3
s_cbranch_scc1 {lab}''')
    flag_set(2, 'v3', 4)
    A.label(lab)

def build(with_g=True):
    import gen_g
    G = sys.modules[__name__]
    prologue()
    vm = gen_g.VM(A)
    A('s_cmp_lt_u32 s3, 4\ns_cbranch_scc1 L_GPATH')
    A('s_waitcnt lgkmcnt(0)\ns_barrier')
    if SPRIO: A(f's_setprio {SPRIO}')
    stamp(0)
    labx = uid('SX')
    A(f's_cmp_lt_u32 s2, {NROLE}\ns_cbranch_scc1 {labx}\ns_cmp_lg_u32 s3, 5\ns_cbranch_scc1 L_END')
    get_nonce('v60', 62)
    A(f'v_mov_b32 v60, {C_NONCE}\nds_write_b64 v60, v[62:63]\ns_waitcnt lgkmcnt(0)\ns_branch L_END')
    A.label(labx)
    s_param_loads()
    labn0 = uid('NS')
    A(f's_cmp_lg_u32 s3, 5\ns_cbranch_scc1 {labn0}')
    get_nonce('v60', 62)
    A(f'v_mov_b32 v60, {C_NONCE}\nds_write_b64 v60, v[62:63]')
    A.label(labn0)
    kgen()
    stamp(4)
    conv()
    stamp(7)
    A('s_branch L_END')
    A.label('L_GPATH')
    ln_loads(False)
    gen_g.g_early(G)
    labw = uid('NW')
    A(f's_cmp_lt_u32 s2, {NROLE}\ns_cbranch_scc1 {labw}\ns_mov_b32 s{R_A+2}, 0')
    A.label(labw)
    for st in range(3): gen_g.w_dma(G, vm, st)
    A('s_waitcnt lgkmcnt(0)\ns_barrier')
    if GPRIO: A(f's_setprio {GPRIO}')
    stamp(0)
    ln_stage()
    stamp(1)
    A(f's_cmp_ge_u32 s2, {NROLE}\ns_cbranch_scc1 L_END')
    vm.drain()
    gen_g.gemm1(G, vm)
    gen_g.gemm2(G, vm)
    flush2()
    A.label('L_END')
    A('s_endpgm')
    A.pad()
    hdr = f'''; fused LN + S4 conv + bilinear GLU kernel (generated by dev/gen.py)
; @launch grid=({NWG},1,1) block=(512,1,1) lds={LDS_SZ + (1024 if PROF else 0)}
.amdgcn_target "amdgcn-amd-amdhsa--gfx950"
.text
.globl {KN}
.p2align 8
.type {KN},@function
{KN}:
'''
    ftr = f'''.section .rodata,"a"
.p2align 6
.amdhsa_kernel {KN}
  .amdhsa_next_free_vgpr 256
  .amdhsa_next_free_sgpr 102
  .amdhsa_accum_offset 128
  .amdhsa_group_segment_fixed_size 0
  .amdhsa_kernarg_size 128
  .amdhsa_user_sgpr_count 2
  .amdhsa_user_sgpr_kernarg_segment_ptr 1
  .amdhsa_system_sgpr_workgroup_id_x 1
.end_amdhsa_kernel
'''
    return hdr + A.text() + ftr

if __name__ == '__main__':
    out = sys.argv[1]
    with_g = 'nog' not in sys.argv[2:]
    PROF = 'prof' in sys.argv[2:]
    for a in sys.argv[2:]:
        if a.startswith('sleep='): POLL_SLEEP = int(a[6:])
        if a == 'nopf': PREFETCH = False
        if a == 'pf': PREFETCH = 1
        if a == 'pfb': PREFETCH = 2
        if a.startswith('sdelay='): SDELAY = int(a[7:])
        if a == 'pf2': PF2 = True
        if a.startswith('codepf='): CODEPF = int(a[7:])
        if a.startswith('gprio='): GPRIO = int(a[6:])
        if a.startswith('sprio='): SPRIO = int(a[6:])
        if a == 'nolo': KLO = False
    open(out, 'w').write(build(with_g))
```

```python
import sys, math, struct
sys.path.insert(0, 'dev')
from asmkit import Asm

KN = 'parallel_sum__ssm_conv_s4__glu_gated_bilinear__prompt_kernel'
NWG = 256
NROLE = 224

XN_OFF, XNT_OFF, H_OFF, AT_OFF, FLG_OFF = 0, 2 << 20, 4 << 20, 12 << 20, 16 << 20
FLG_SZ = 5 * 256 * 128
XN_SZ = 2048 * 448 * 2
H_SZ = 2048 * 1792 * 2
G_RING = 0
S_PAR = 98304
S_KQ = S_PAR + 10240
S_KC = S_KQ + 16384
S_KREV = S_PAR + 35328
KRSZ = 4640
S_CNT = S_KREV + 4 * KRSZ
LNB = G_RING + 65536
H_STG = S_CNT + 128
LDS_SZ = H_STG + 10240
S_RED = S_PAR
S_U = S_PAR + 16384
C_G, C_S, C_P0, C_P1 = S_CNT, S_CNT + 4, S_CNT + 8, S_CNT + 12
C_H0, C_H1, C_NONCE, C_L2, C_S2, C_L3 = S_CNT + 64, S_CNT + 68, S_CNT + 72, S_CNT + 80, S_CNT + 84, S_CNT + 88
cg_base = 0
D_A = 56

def f2u(x): return struct.unpack('<I', struct.pack('<f', x))[0]
LOG2E = f2u(1.4426950408889634)
INV2PI_HI = struct.unpack('<f', struct.pack('<f', 1 / (2 * math.pi)))[0]
INV2PI_LO = f2u(1 / (2 * math.pi) - INV2PI_HI)
INV2PI_HI = f2u(INV2PI_HI)

A = Asm()
_uid = [0]
def uid(p):
    _uid[0] += 1
    return f'{p}_{_uid[0]}'

S_UU, S_ARE, S_AIM, S_BRE, S_BIM, S_CRE, S_CIM, S_LDT = 16, 18, 20, 22, 24, 26, 28, 30
S_DSK, S_BX, S_WG, S_WU, S_WD, S_OUT, S_DBG, S_WS = 32, 34, 36, 38, 40, 42, 44, 46
R_X, R_XN, R_XNT, R_DBG, R_A, R_B, R_C, R_D = 48, 52, 56, 60, 64, 68, 72, 76
def srd(r): return f's[{r}:{r+3}]'

def mk_srd(r, base, off, size):
    if off == 0:
        A(f's_mov_b32 s{r}, s{base}\ns_mov_b32 s{r+1}, s{base+1}')
    else:
        A(f's_add_u32 s{r}, s{base}, {off}\ns_addc_u32 s{r+1}, s{base+1}, 0')
    A(f's_mov_b32 s{r+2}, {size}\ns_mov_b32 s{r+3}, 0x00020000')

def wave_sum(v, t, s0=80):
    A(f'''v_add_f32_dpp {t}, {v}, {v} quad_perm:[1,0,3,2] row_mask:0xf bank_mask:0xf
v_add_f32_dpp {v}, {t}, {t} quad_perm:[2,3,0,1] row_mask:0xf bank_mask:0xf
v_add_f32_dpp {t}, {v}, {v} row_half_mirror row_mask:0xf bank_mask:0xf
v_add_f32_dpp {v}, {t}, {t} row_mirror row_mask:0xf bank_mask:0xf
v_readlane_b32 s{s0}, {v}, 0
v_readlane_b32 s{s0+1}, {v}, 16
v_readlane_b32 s{s0+2}, {v}, 32
v_readlane_b32 s{s0+3}, {v}, 48
v_mov_b32 {v}, s{s0}
v_add_f32 {v}, s{s0+1}, {v}
v_add_f32 {v}, s{s0+2}, {v}
v_add_f32 {v}, s{s0+3}, {v}''')

def lds_sync(cnt_addr, target, vt, vone, st=84):
    lp = uid('SYNC')
    A(f'''s_waitcnt lgkmcnt(0)
v_mov_b32 {vt}, {cnt_addr}
v_mov_b32 {vone}, 1
s_mov_b64 exec, 1
ds_add_u32 {vt}, {vone}
s_mov_b64 exec, -1''')
    A.label(lp)
    A(f'''ds_read_b32 {vone}, {vt}
s_waitcnt lgkmcnt(0)
v_readfirstlane_b32 s{st}, {vone}
s_cmp_ge_u32 s{st}, {target}
s_cbranch_scc0 {lp}''')

def dbg_add(idx_sgpr_or_imm, vt, vone):
    if isinstance(idx_sgpr_or_imm, int):
        A(f'v_mov_b32 {vt}, {idx_sgpr_or_imm*4}')
    else:
        A(f'v_mov_b32 {vt}, {idx_sgpr_or_imm}')
    A(f'''v_mov_b32 {vone}, 1
s_mov_b64 exec, 1
buffer_atomic_add {vone}, {vt}, {srd(R_DBG)}, 0 offen sc1
s_mov_b64 exec, -1''')

_fl = [0]
POLL_SLEEP = 2
PREFETCH = 1
GPRIO = 3
SPRIO = 0
KLO = False
CODEPF = 0
SDELAY = 4
PF2 = False
R_FLG = 8
def get_nonce(vt, vv):
    lp = uid('NONCE')
    A(f'v_mov_b32 {vt}, 0')
    A.label(lp)
    A(f'''buffer_load_dwordx2 v[{vv}:{vv+1}], {vt}, {srd(R_DBG)}, 0 offen sc0 sc1
s_waitcnt vmcnt(0)
v_readfirstlane_b32 s12, v{vv}
v_readfirstlane_b32 s13, v{vv+1}
s_cmp_lg_u32 s12, 0
s_cbranch_scc1 {lp}_ok
s_sleep 4
s_branch {lp}''')
    A.label(lp + '_ok')

def lds_nonce(vt, vv):
    lp = uid('LNON')
    A(f'v_mov_b32 {vt}, {C_NONCE}')
    A.label(lp)
    A(f'''ds_read_b64 v[{vv}:{vv+1}], {vt}
s_waitcnt lgkmcnt(0)
v_readfirstlane_b32 s12, v{vv}
v_readfirstlane_b32 s13, v{vv+1}
s_cmp_lg_u32 s12, 0
s_cbranch_scc0 {lp}''')

def flag_wait(setups, vi, vv, vt, leader=0, st=84):
    lp0 = uid('POLL')
    flag = S_CNT + 16 + 4 * _fl[0]; _fl[0] += 1
    assert _fl[0] <= 12
    A(f'v_mov_b32 {vt}, {flag}')
    A(f's_cmp_lg_u32 s3, {leader}\ns_cbranch_scc1 {lp0}_w')
    for setup in setups:
        lp = uid('PL')
        setup()
        A(f'v_cmp_le_u32 vcc, {5*256}, {vi}\ns_mov_b64 s[14:15], vcc\nv_lshlrev_b32 {vi}, 7, {vi}')
        A.label(lp)
        A(f'''buffer_load_dwordx2 v[{vv}:{vv+1}], {vi}, {srd(R_FLG)}, 0 offen sc0 sc1
s_waitcnt vmcnt(0)
v_cmp_eq_u32 vcc, s12, v{vv}
v_cmp_eq_u32 s[82:83], s13, v{vv+1}
s_and_b64 vcc, vcc, s[82:83]
s_or_b64 vcc, vcc, s[14:15]
s_cmp_eq_u64 vcc, -1
s_cbranch_scc1 {lp}_ok
s_sleep {POLL_SLEEP}
s_branch {lp}''')
        A.label(lp + '_ok')
    A(f'v_mov_b32 v{vv}, 1\nds_write_b32 {vt}, v{vv}\ns_branch {lp0}_done')
    A.label(lp0 + '_w')
    A(f'''ds_read_b32 v{vv}, {vt}
s_waitcnt lgkmcnt(0)
v_readfirstlane_b32 s{st}, v{vv}
s_cmp_eq_u32 s{st}, 1
s_cbranch_scc1 {lp0}_done
s_sleep 1
s_branch {lp0}_w''')
    A.label(lp0 + '_done')

def flag_set(phase, vt, vv):
    A(f'''s_add_u32 s82, s2, {phase*256}
s_lshl_b32 s82, s82, 7
v_mov_b32 {vt}, s82
v_mov_b32 v{vv}, s12
v_mov_b32 v{vv+1}, s13
s_mov_b64 exec, 1
buffer_store_dwordx2 v[{vv}:{vv+1}], {vt}, {srd(R_FLG)}, 0 offen sc0 sc1
s_mov_b64 exec, -1''')

PROF = False
PROF_OFF = 32 << 20
def stamp(i):
    if not PROF: return
    A(f'''s_waitcnt lgkmcnt(0)
s_memrealtime s[94:95]
s_lshl_b32 s96, s2, 3
s_add_u32 s96, s96, s3
s_lshl_b32 s96, s96, 8
s_add_u32 s96, s96, {PROF_OFF + 8*i}
v_mov_b32 v25, s96
s_waitcnt lgkmcnt(0)
v_mov_b32 v26, s94
v_mov_b32 v27, s95
global_store_dwordx2 v25, v[26:27], s[{S_WS}:{S_WS+1}]''')

_st2 = []
def stamp2(i):
    if not PROF: return
    A(f'''s_memtime s[94:95]
s_lshl_b32 s96, s3, 8
s_add_u32 s96, s96, {LDS_SZ + 8*i}
v_mov_b32 v{60 if i < 10 else 12 if i < 28 else 14}, s96
s_waitcnt lgkmcnt(0)
v_mov_b32 v{61 if i < 10 else 13 if i < 28 else 15}, s94
ds_write_b32 v{60 if i < 10 else 12 if i < 28 else 14}, v{61 if i < 10 else 13 if i < 28 else 15}''')
    _st2.append(i)

def flush2():
    if not PROF: return
    A(f'''s_lshl_b32 s96, s3, 8
s_add_u32 s96, s96, {LDS_SZ}
v_lshlrev_b32 v14, 2, v1
v_add_u32 v15, s96, v14
ds_read_b32 v16, v15
s_lshl_b32 s96, s2, 3
s_add_u32 s96, s96, s3
s_lshl_b32 s96, s96, 8
s_add_u32 s96, s96, {PROF_OFF + (4<<20)}
v_add_u32 v14, s96, v14
s_waitcnt lgkmcnt(0)
global_store_dword v14, v16, s[{S_WS}:{S_WS+1}]''')

def prologue():
    A(f'''s_cmp_ge_u32 s2, {NWG}
s_cbranch_scc1 L_END
s_load_dwordx16 s[16:31], s[0:1], 0
s_load_dwordx16 s[32:47], s[0:1], 64
v_lshrrev_b32 v2, 6, v0
v_and_b32 v1, 63, v0
v_readfirstlane_b32 s3, v2
s_waitcnt lgkmcnt(0)''')
    if CODEPF:
        A(f'''s_getpc_b64 s[80:81]
s_and_b32 s80, s80, 0xffffff00
v_lshlrev_b32 v2, 7, v0
v_min_u32 v2, L_CODE_END-{KN}-4, v2
global_load_dword v127, v2, s[80:81]''')
    mk_srd(R_X, S_UU, 0, XN_SZ)
    mk_srd(R_XN, S_WS, XN_OFF, XN_SZ)
    mk_srd(R_XNT, S_WS, XNT_OFF, XN_SZ)
    mk_srd(R_DBG, S_DBG, 0, 256)
    mk_srd(R_FLG, S_WS, FLG_OFF, FLG_SZ)
    A(f'''s_mov_b32 s12, 0
s_mov_b32 s13, 0
s_cmp_lg_u32 s2, 0
s_cbranch_scc1 L_NONP
s_cmp_lg_u32 s3, 7
s_cbranch_scc1 L_NONP
s_memrealtime s[80:81]
s_waitcnt lgkmcnt(0)
s_or_b32 s80, s80, 1
v_mov_b32 v2, 0
v_mov_b32 v4, s80
v_mov_b32 v5, s81
s_mov_b64 exec, 1
buffer_store_dwordx2 v[4:5], v2, {srd(R_DBG)}, 0 offen sc0 sc1
s_mov_b64 exec, -1''')
    A.label('L_NONP')
    A(f'''v_mov_b32 v2, {S_CNT}
v_mov_b32 v4, 0
v_mov_b32 v5, 0
v_mov_b32 v6, 0
v_mov_b32 v7, 0
ds_write_b128 v2, v[4:7]
ds_write_b128 v2, v[4:7] offset:16
ds_write_b128 v2, v[4:7] offset:32
ds_write_b128 v2, v[4:7] offset:48
ds_write_b128 v2, v[4:7] offset:64
ds_write_b128 v2, v[4:7] offset:80''')

def ln_loads(extra):
    A(f'''s_lshl_b32 s80, s2, 3
s_and_b32 s81, s3, 3
s_lshl_b32 s81, s81, 1
s_add_u32 s80, s80, s81
s_add_u32 s80, s80, {1792 if extra else 0}
s_mul_i32 s81, s80, 896
v_lshlrev_b32 v2, 4, v1
v_add_u32 v2, s81, v2
v_mov_b32 v3, 0x7f000000
v_cmp_gt_u32 vcc, 56, v1
v_cndmask_b32 v2, v3, v2, vcc
buffer_load_dwordx4 v[4:7], v2, {srd(R_X)}, 0 offen
buffer_load_dwordx4 v[36:39], v2, {srd(R_X)}, 0 offen offset:896''')

def ln_prep(wait):
    A(f'''s_and_b32 s81, s3, 3
s_lshl_b32 s81, s81, 2
s_add_u32 s81, s81, {LNB}
v_mul_u32_u24 v3, 144, v1
v_add_u32 v3, s81, v3
v_cmp_gt_u32 vcc, 56, v1
v_mov_b32 v24, {f2u(1.0 / 448.0)}
v_mov_b32 v25, 0x43e00000
s_waitcnt vmcnt({wait})''')

def ln_extra():
    lab = uid('LNX')
    A(f's_cmp_ge_u32 s2, 32\ns_cbranch_scc1 {lab}')
    ln_prep(14)
    ln_rows((4, 36), '0', 9216)
    A(f'''s_waitcnt lgkmcnt(0)
v_mov_b32 v4, {C_L2}
v_mov_b32 v5, 1
s_mov_b64 exec, 1
ds_add_u32 v4, v5
s_mov_b64 exec, -1''')
    A.label(lab)

def ln_rows(srcs, soff, lnb_off):
    inv448 = f2u(1.0 / 448.0)
    for row in range(2):
        S = srcs[row]
        for i in range(4):
            A(f'v_lshlrev_b32 v{8+2*i}, 16, v{S+i}\nv_and_b32 v{9+2*i}, 0xffff0000, v{S+i}')
        A('''v_add_f32 v16, v8, v9
v_add_f32 v17, v10, v11
v_add_f32 v18, v12, v13
v_add_f32 v19, v14, v15
v_add_f32 v16, v16, v17
v_add_f32 v18, v18, v19
v_add_f32 v16, v16, v18''')
        wave_sum('v16', 'v17')
        A(f'''v_mul_f32 v17, v16, v24
v_fma_f32 v18, -v17, v25, v16
v_fma_f32 v17, v18, v24, v17''')
        A('v_mov_b32 v18, 0')
        for i in range(8):
            A(f'v_sub_f32 v19, v{8+i}, v17\nv_fmac_f32 v18, v19, v19')
        A('v_mov_b32 v19, 0\nv_cndmask_b32 v18, v19, v18, vcc')
        wave_sum('v18', 'v19')
        A(f'''v_mul_f32 v19, v18, v24
v_fma_f32 v20, -v19, v25, v18
v_fma_f32 v19, v20, v24, v19
v_cvt_pk_bf16_f32 v17, v17, v19
v_and_b32 v19, 0xffff0000, v17
v_lshlrev_b32 v17, 16, v17
v_add_f32 v19, {f2u(1e-5)}, v19
v_cvt_pk_bf16_f32 v19, v19, v19
v_lshlrev_b32 v19, 16, v19
v_sqrt_f32 v19, v19
v_cvt_pk_bf16_f32 v19, v19, v19
v_lshlrev_b32 v19, 16, v19
v_rcp_f32 v19, v19''')
        O = 20 if row == 0 else 40
        for i in range(4):
            A(f'''v_sub_f32 v{8+2*i}, v{8+2*i}, v17
v_sub_f32 v{9+2*i}, v{9+2*i}, v17
v_cvt_pk_bf16_f32 v{S+i}, v{8+2*i}, v{9+2*i}
v_lshlrev_b32 v{8+2*i}, 16, v{S+i}
v_and_b32 v{9+2*i}, 0xffff0000, v{S+i}
v_mul_f32 v{8+2*i}, v{8+2*i}, v19
v_mul_f32 v{9+2*i}, v{9+2*i}, v19
v_cvt_pk_bf16_f32 v{O+i}, v{8+2*i}, v{9+2*i}''')
        A(f'buffer_store_dwordx4 v[{O}:{O+3}], v2, {srd(R_XN)}, {soff} offen offset:{896*row} sc1')
        for i in range(4):
            A(f'ds_write_b16 v3, v{O+i} offset:{lnb_off+32*i+2*row}\nds_write_b16_d16_hi v3, v{O+i} offset:{lnb_off+32*i+16+2*row}')

def ln_stage():
    global cg_base
    ln_prep(12)
    stamp2(0)
    ln_rows((4, 36), '0', 0)
    stamp2(1)
    cg_base += 1
    lds_sync(C_G, 4 * cg_base, 'v4', 'v5')
    stamp2(3)
    A(f'''v_lshrrev_b32 v3, 3, v0
v_mul_u32_u24 v3, 144, v3
v_and_b32 v4, 7, v0
v_lshl_add_u32 v3, v4, 4, v3
v_add_u32 v3, {LNB}, v3
ds_read_b128 v[4:7], v3
ds_read_b128 v[8:11], v3 offset:4608
v_lshlrev_b32 v3, 4, v0
s_mul_i32 s81, s2, 7168
v_add_u32 v3, s81, v3
v_mov_b32 v20, 0x7f000000
v_cmp_gt_u32 vcc, 192, v0
v_add_u32 v21, 4096, v3
v_cndmask_b32 v21, v20, v21, vcc
s_waitcnt lgkmcnt(0)
buffer_store_dwordx4 v[4:7], v3, {srd(R_XNT)}, 0 offen sc1
buffer_store_dwordx4 v[8:11], v21, {srd(R_XNT)}, 0 offen sc1''')
    stamp2(4)
    lds_nonce('v4', 6)
    def last_sets(cnt, phase):
        lab = uid('LS')
        A(f'''v_mov_b32 v4, {cnt}
v_mov_b32 v5, 1
s_mov_b64 exec, 1
ds_add_rtn_u32 v5, v4, v5
s_mov_b64 exec, -1
s_waitcnt lgkmcnt(0)
v_readfirstlane_b32 s84, v5
s_cmp_lg_u32 s84, 3
s_cbranch_scc1 {lab}''')
        flag_set(phase, 'v4', 6)
        A.label(lab)
    A('s_waitcnt vmcnt(2)')
    last_sets(C_L2, 0)
    A('s_waitcnt vmcnt(0)')
    last_sets(C_L3, 4)
    stamp2(5)
    cg_base += 1
    lds_sync(C_G, 4 * cg_base, 'v4', 'v5')
    stamp2(6)

ROWS_L = list(range(8)) + [256, 258, 260, 262, 512, 516, 768, 772, 1024, 1280, 1536, 1792, 2048]

def s_param_loads():
    A(f'''s_sub_u32 s87, s3, 4
s_lshr_b32 s85, s87, 1
s_lshl_b32 s84, s2, 1
s_add_u32 s85, s85, s84
s_and_b32 s86, s87, 1
s_lshl_b32 s84, s85, 9
s_lshl_b32 s88, s86, 8
s_add_u32 s84, s84, s88
v_lshlrev_b32 v98, 1, v1
v_add_u32 v98, s84, v98
s_lshl_b32 s84, s85, 1
v_mov_b32 v99, s84''')
    for k, b in enumerate((S_ARE, S_AIM, S_BRE, S_BIM, S_CRE, S_CIM)):
        A(f'global_load_ushort v{100+2*k}, v98, s[{b}:{b+1}]\nglobal_load_ushort v{101+2*k}, v98, s[{b}:{b+1}] offset:128')
    A(f'global_load_ushort v112, v99, s[{S_LDT}:{S_LDT+1}]\nglobal_load_ushort v113, v99, s[{S_DSK}:{S_DSK+1}]')

def interleave(streams):
    out = []
    n = max(len(s) for s in streams)
    for i in range(n):
        for s in streams:
            if i < len(s): out.append(s[i])
    return out

def l2_prefetch(which):
    A(f'''s_and_b32 s92, s2, 7
s_lshr_b32 s93, s2, 3
s_mul_i32 s94, s93, 37
s_lshr_b32 s94, s94, 8
s_mul_i32 s95, s94, 7
s_sub_u32 s95, s93, s95
s_and_b32 s96, s92, 1
s_mul_i32 s96, s96, 7
s_add_u32 s96, s96, s95''')
    if which == 0:
        A(f'''s_mul_i32 s97, s94, 112
s_mul_i32 s98, s87, 28
s_add_u32 s97, s97, s98
v_lshrrev_b32 v6, 1, v1
v_min_u32 v6, 27, v6
v_add_u32 v6, s97, v6
v_mul_u32_u24 v6, 3584, v6
v_and_b32 v7, 1, v1
v_lshl_add_u32 v6, v7, 7, v6
s_lshl_b32 s97, s96, 8
v_add_u32 v6, s97, v6
global_load_dword v96, v6, s[{S_WG}:{S_WG+1}]
global_load_dword v97, v6, s[{S_WU}:{S_WU+1}]''')
    else:
        A(f'''s_mul_i32 s97, s94, 448
s_mul_i32 s98, s87, 112
s_add_u32 s97, s97, s98
v_min_u32 v6, 55, v1
v_add_u32 v6, s97, v6
v_mul_u32_u24 v6, 896, v6
s_lshl_b32 s97, s95, 7
v_add_u32 v6, s97, v6
global_load_dword v98, v6, s[{S_WD}:{S_WD+1}]
v_add_u32 v6, {56*896}, v6
global_load_dword v100, v6, s[{S_WD}:{S_WD+1}]''')

def s_precompute():
    A(f'''s_lshr_b32 s84, s87, 1
s_lshl_b32 s84, s84, 12
s_add_u32 s84, s84, {S_KC}
s_cmp_eq_u32 s86, 0
s_cselect_b64 vcc, -1, 0
v_and_b32 v2, 31, v1
v_lshlrev_b32 v2, 3, v2
v_lshrrev_b32 v6, 5, v1
v_cmp_eq_u32 s[92:93], 0, v6''')
    BIG = 4096
    def lrow(r): return ROWS_L[r] if r < 21 else BIG
    for v in range(8):
        c = [[lrow(16 * nh + 8 * (v >> 2) + 4 * hf + (v & 3)) for hf in range(2)] for nh in range(2)]
        t = 32 + 4 * v
        A(f'''v_mov_b32 v{t}, {c[0][0]}
v_mov_b32 v{t+1}, {c[1][0]}
v_cndmask_b32 v{t}, v{t+1}, v{t}, vcc
v_mov_b32 v{t+1}, {c[0][1]}
v_mov_b32 v{t+2}, {c[1][1]}
v_cndmask_b32 v{t+1}, v{t+2}, v{t+1}, vcc
v_cndmask_b32 v{t}, v{t+1}, v{t}, s[92:93]
v_add_u32 v{t}, v{t}, v2
v_cvt_f32_u32 v{t+1}, v{t}
v_lshrrev_b32 v{t+1}, 16, v{t+1}
v_subrev_u32 v{t+1}, 17024, v{t+1}''')
    for v in range(8):
        t = 32 + 4 * v
        A(f'''v_cmp_gt_u32 vcc, 256, v{t}
v_cndmask_b32 v{t+1}, v{t+1}, v{t}, vcc
v_cmp_lt_u32 vcc, 2048, v{t}
v_mov_b32 v{t+2}, 1000
v_cndmask_b32 v{t+1}, v{t+1}, v{t+2}, vcc
v_lshlrev_b32 v{t+1}, 2, v{t+1}
v_add_u32 v{t+1}, s84, v{t+1}
v_accvgpr_write_b32 a{96+v}, v{t+1}''')
    A(f'''s_mul_i32 s91, s86, 1160
v_add_u32 v2, s91, v1
v_mov_b32 v6, 1001''')
    for it in range(19):
        t = 8 + 4 * (it % 6)
        A(f'''v_sub_u32 v{t}, {2063 - 64*it}, v2
v_cvt_f32_i32 v{t+1}, v{t}
v_cvt_pk_bf16_f32 v{t+1}, v{t+1}, v{t+1}
v_and_b32 v{t+1}, 0xffff, v{t+1}
v_subrev_u32 v{t+1}, 17024, v{t+1}
v_cmp_gt_u32 vcc, 256, v{t}
v_cndmask_b32 v{t+1}, v{t+1}, v{t}, vcc
v_cmp_gt_u32 vcc, 2048, v{t}
v_cndmask_b32 v{t+1}, v6, v{t+1}, vcc
v_lshlrev_b32 v{t+1}, 2, v{t+1}
v_add_u32 v{t+1}, s84, v{t+1}
v_accvgpr_write_b32 a{104+it}, v{t+1}''')
    A(f'''s_add_u32 s84, s84, 4004
v_mov_b32 v6, s84
v_mov_b32 v7, 0
ds_write_b32 v6, v7''')

def kgen():
    A('s_waitcnt vmcnt(0)')
    for k in range(14):
        A(f'v_lshlrev_b32 v{100+k}, 16, v{100+k}')
    A(f'''v_mov_b32 v2, {LOG2E}
v_mul_f32 v112, v112, v2
v_exp_f32 v112, v112
v_cvt_pk_bf16_f32 v112, v112, v112
v_lshlrev_b32 v112, 16, v112
s_mul_i32 s84, s87, 2560
s_add_u32 s84, s84, {S_PAR}
v_lshlrev_b32 v3, 2, v1
v_add_u32 v3, s84, v3
v_mov_b32 v4, {INV2PI_HI}
v_mov_b32 v5, {INV2PI_LO}''')
    for h in range(2):
        are, aim, bre, bim, cre, cim = [f'v{100+2*k+h}' for k in range(6)]
        A(f'''v_mul_f32 {are}, v112, {are}
v_mul_f32 {aim}, v112, {aim}
v_mul_f32 {bre}, v112, {bre}
v_mul_f32 {bim}, v112, {bim}
v_mul_f32 v6, {are}, v2
v_mul_f32 v7, {aim}, v4
v_fma_f32 v8, {aim}, v4, -v7
v_fma_f32 v8, {aim}, v5, v8
v_and_b32 v9, 0xffffff00, v7
v_sub_f32 v7, v7, v9
v_add_f32 v7, v7, v8
v_mul_f32 v10, {cre}, {bre}
v_fma_f32 v10, -{cim}, {bim}, v10
v_mul_f32 v11, {cre}, {bim}
v_fma_f32 v11, {cim}, {bre}, v11
ds_write_b32 v3, v6 offset:{256*h}
ds_write_b32 v3, v9 offset:{512+256*h}
ds_write_b32 v3, v7 offset:{1024+256*h}
ds_write_b32 v3, v10 offset:{1536+256*h}
ds_write_b32 v3, v11 offset:{2048+256*h}''')
    if PREFETCH == 1: l2_prefetch(0)
    s_precompute()
    A(f's_mul_i32 s84, s87, 2560\ns_add_u32 s84, s84, {S_PAR}')
    A('v_and_b32 v6, 31, v1\nv_mov_b32 v4, 0')
    for i, l in enumerate(ROWS_L):
        if l == 0: continue
        A(f'v_cmp_eq_u32 vcc, {i}, v6\nv_mov_b32 v7, {f2u(float(l))}\nv_cndmask_b32 v4, v4, v7, vcc')
    A(f'''v_lshlrev_b32 v5, 3, v6
v_cvt_f32_u32 v5, v5
v_lshrrev_b32 v3, 5, v1
v_lshlrev_b32 v3, 4, v3
v_add_u32 v3, s84, v3''')
    ACC = 112
    A('v_mov_b32 v99, v113')
    for i in range(16): A(f'v_mov_b32 v{ACC+i}, 0')
    P = [8, 28]
    def preads(pb):
        for k in range(5):
            A(f'ds_read_b128 v[{pb+4*k}:{pb+4*k+3}], v3 offset:{512*k}')
    if SDELAY:
        lpw = uid('SW')
        A(f'v_mov_b32 v6, {C_G}')
        A.label(lpw)
        A(f'''ds_read_b32 v7, v6
s_waitcnt lgkmcnt(0)
v_readfirstlane_b32 s88, v7
s_cmp_ge_u32 s88, {SDELAY}
s_cbranch_scc1 {lpw}_ok
s_sleep 2
s_branch {lpw}''')
        A.label(lpw + '_ok')
    if PREFETCH == 2: l2_prefetch(0)
    A('s_waitcnt lgkmcnt(0)')
    preads(P[0])
    A('s_mov_b32 s88, 0')
    loop = uid('KG')
    A.label(loop)
    for half in range(2):
        pb = P[half]; pn = P[1 - half]
        A('v_add_u32 v3, 32, v3')
        A('s_waitcnt lgkmcnt(0)')
        preads(pn)
        streams = []
        for e in range(4):
            for xy in range(2):
                t = 64 + (e * 2 + xy) * 4
                a, b, c, d = f'v{t}', f'v{t+1}', f'v{t+2}', f'v{t+3}'
                l = 'v4' if xy == 0 else 'v5'
                ar2, rh, rl, cr, ci = [f'v{pb+4*k+e}' for k in range(5)]
                hi = f'v{48+e}' if xy == 0 else f'v{56+e}'
                lo = f'v{52+e}' if xy == 0 else f'v{60+e}'
                s = [f'v_mul_f32 {b}, {rh}, {l}',
                     f'v_mul_f32 {a}, {ar2}, {l}',
                     f'v_fract_f32 {b}, {b}',
                     f'v_exp_f32 {a}, {a}',
                     f'v_fma_f32 {b}, {rl}, {l}, {b}',
                     f'v_cos_f32 {c}, {b}',
                     f'v_sin_f32 {d}, {b}']
                if xy == 0:
                    s += [f'v_mul_f32 {b}, {a}, {cr}',
                          f'v_mul_f32 {a}, {a}, {ci}',
                          f'v_mul_f32 {hi}, {b}, {c}',
                          f'v_mul_f32 {lo}, {b}, {d}',
                          f'v_fma_f32 {b}, -{a}, {d}, {hi}',
                          f'v_fma_f32 {a}, -{a}, {c}, -{lo}']
                    re_, im_ = b, a
                else:
                    s += [f'v_mul_f32 {b}, {a}, {c}',
                          f'v_mul_f32 {a}, {a}, {d}']
                    re_, im_ = b, a
                s += [f'v_cvt_pk_bf16_f32 {hi}, {re_}, {im_}']
                if KLO:
                    s += [f'v_lshlrev_b32 {c}, 16, {hi}',
                          f'v_and_b32 {d}, 0xffff0000, {hi}',
                          f'v_sub_f32 {re_}, {re_}, {c}',
                          f'v_sub_f32 {im_}, {im_}, {d}',
                          f'v_cvt_pk_bf16_f32 {lo}, {re_}, {im_}']
                streams.append(s)
        for x in interleave(streams): A(x)
        acc = f'v[{ACC}:{ACC+15}]'
        A(f'v_mfma_f32_32x32x16_bf16 {acc}, v[48:51], v[56:59], {acc}')
        if KLO:
            A(f'''v_mfma_f32_32x32x16_bf16 {acc}, v[48:51], v[60:63], {acc}
v_mfma_f32_32x32x16_bf16 {acc}, v[52:55], v[56:59], {acc}''')
    A(f'''s_add_u32 s88, s88, 1
s_cmp_lt_u32 s88, 8
s_cbranch_scc1 {loop}''')
    stamp(2)
    if PREFETCH: l2_prefetch(1)
    A(f'''s_lshl_b32 s84, s87, 12
s_add_u32 s84, s84, {S_KQ}
v_lshrrev_b32 v3, 5, v1
v_lshlrev_b32 v3, 9, v3
v_and_b32 v6, 31, v1
v_lshl_add_u32 v3, v6, 2, v3
v_add_u32 v6, s84, v3''')
    for v in range(16):
        A(f'ds_write_b32 v6, v{ACC+v} offset:{(8*(v>>2)+(v&3))*128}')
    A(f'''s_lshr_b32 s89, s87, 1
s_lshl_b32 s89, s89, 2
s_add_u32 s89, s89, {C_P0}''')
    lds_sync('s89', 2, 'v7', 'v8')
    A(f'''s_xor_b32 s84, s87, 1
s_lshl_b32 s84, s84, 12
s_add_u32 s84, s84, {S_KQ}
s_lshl_b32 s90, s86, 11
s_add_u32 s84, s84, s90
v_add_u32 v6, s84, v3
s_lshr_b32 s84, s87, 1
s_lshl_b32 s84, s84, 12
s_add_u32 s84, s84, {S_KC}''')
    for v in range(8):
        A(f'ds_read_b32 v{8+v}, v6 offset:{(8*(v>>2)+(v&3))*128}')
    A('s_cmp_eq_u32 s86, 0\ns_cselect_b64 vcc, -1, 0')
    for v in range(8):
        A(f'v_cndmask_b32 v{16+v}, v{ACC+8+v}, v{ACC+v}, vcc')
    for v in range(8):
        A(f'v_accvgpr_read_b32 v{33+4*v}, a{96+v}')
    A('s_waitcnt lgkmcnt(0)')
    for v in range(8):
        A(f'''v_add_f32 v{8+v}, v{8+v}, v{16+v}
v_cvt_pk_bf16_f32 v{8+v}, v{8+v}, v{8+v}
ds_write_b32 v{33+4*v}, v{8+v}''')
    lds_sync('s89', 4, 'v7', 'v8')
    stamp(3)
    NIT = 19
    A(f'''s_lshr_b32 s84, s87, 1
s_mul_i32 s90, s84, {2*KRSZ}
s_add_u32 s90, s90, {S_KREV}
s_mul_i32 s91, s86, 1160
v_add_u32 v2, s91, v1
v_lshlrev_b32 v3, 1, v2
v_add_u32 v3, s90, v3''')
    for it in range(NIT):
        A(f'v_accvgpr_read_b32 v{8+it}, a{104+it}')
    for it in range(NIT):
        A(f'ds_read_b32 v{32+it}, v{8+it}')
    for it in range(NIT):
        A(f's_waitcnt lgkmcnt({min(15, 2*it + NIT - 1 - it) if False else 0})' if it == 0 else '')
        if it == NIT - 1:
            A(f'v_cmp_gt_u32 vcc, {2320 - 64*(NIT-1)}, v2\ns_and_saveexec_b64 s[92:93], vcc')
        A(f'ds_write_b16 v3, v{32+it} offset:{128*it}')
        if it == NIT - 1:
            A('s_mov_b64 exec, s[92:93]')
    lds_sync(C_S, 4, 'v7', 'v8')

def conv():
    labn = uid('SN')
    A(f's_cmp_lg_u32 s3, 4\ns_cbranch_scc1 {labn}')
    lds_nonce('v2', 6)
    A.label(labn)
    lp0 = uid('LNA')
    flag = S_CNT + 16 + 4 * _fl[0]; _fl[0] += 1
    A(f'''v_mov_b32 v2, {flag}
s_cmp_lg_u32 s3, 4
s_cbranch_scc1 {lp0}_w
v_lshlrev_b32 v3, 7, v1''')
    A.label(lp0)
    for c in range(4):
        A(f's_mov_b32 s84, {4*256*128 + 64*128*c}\nbuffer_load_dwordx2 v[{8+2*c}:{9+2*c}], v3, {srd(R_FLG)}, s84 offen sc0 sc1')
    A('s_waitcnt vmcnt(0)\ns_mov_b64 s[14:15], -1')
    for c in range(4):
        A(f'''v_cmp_eq_u32 vcc, s12, v{8+2*c}
s_and_b64 s[14:15], s[14:15], vcc
v_cmp_eq_u32 vcc, s13, v{9+2*c}
s_and_b64 s[14:15], s[14:15], vcc''')
    A(f'''s_cmp_eq_u64 s[14:15], -1
s_cbranch_scc1 {lp0}_ok
s_sleep 2
s_branch {lp0}''')
    A.label(lp0 + '_ok')
    A(f'v_mov_b32 v6, 1\nds_write_b32 v2, v6\ns_branch {lp0}_done')
    A.label(lp0 + '_w')
    A(f'''ds_read_b32 v6, v2
s_waitcnt lgkmcnt(0)
v_readfirstlane_b32 s84, v6
s_cmp_eq_u32 s84, 1
s_cbranch_scc1 {lp0}_done
s_sleep 1
s_branch {lp0}_w''')
    A.label(lp0 + '_done')
    stamp(5)
    A(f'''s_lshl_b32 s84, s85, 12
s_add_u32 s84, s84, {AT_OFF}''')
    mk_srd(R_B, S_WS, 's84', 4096)
    A(f'''s_lshr_b32 s84, s87, 1
s_mul_i32 s91, s84, 8448
s_add_u32 s91, s91, {S_U}
s_lshl_b32 s90, s86, 11
s_add_u32 s90, s90, s91
s_lshl_b32 s84, s86, 7
v_add_u32 v8, s84, v1
v_mul_u32_u24 v8, 7168, v8
s_lshl_b32 s84, s85, 4
v_add_u32 v8, s84, v8
v_mov_b32 v9, 0''')
    for i in range(2):
        A(f's_add_u32 m0, s90, {64 + 1024*i}\ns_mov_b32 s84, {64*7168*i}\nbuffer_load_dwordx4 v8, {srd(R_XNT)}, s84 offen sc1 lds')
    A(f'''v_and_b32 v10, 15, v1
v_lshlrev_b32 v10, 2, v10
s_mul_i32 s84, s86, 4160
s_add_u32 s84, s84, s91
v_add_u32 v10, s84, v10
ds_write_b32 v10, v9
ds_write_b32 v10, v9 offset:4224
s_waitcnt vmcnt(0)''')
    lds_sync('s89', 6, 'v12', 'v13')
    A(f'''s_lshl_b32 s84, s86, 11
s_add_u32 s84, s84, s91
s_add_u32 s84, s84, 48
v_lshlrev_b32 v10, 4, v1
v_add_u32 v10, s84, v10''')
    for i in range(3):
        A(f'ds_read_b128 v[{16+8*i}:{19+8*i}], v10 offset:{1024*i}\nds_read_b32 v{20+8*i}, v10 offset:{1024*i+16}')
    A('s_waitcnt lgkmcnt(0)')
    for i in range(3):
        b = 16 + 8 * i
        for k in range(4):
            A(f'v_alignbit_b32 v{b+k}, v{b+k+1}, v{b+k}, 16')
        if i == 2:
            A(f'v_cmp_gt_u32 vcc, 2, v1\ns_and_saveexec_b64 s[92:93], vcc')
        A(f'ds_write_b128 v10, v[{b}:{b+3}] offset:{1024*i+4224}')
        if i == 2:
            A('s_mov_b64 exec, s[92:93]')
    lds_sync('s89', 8, 'v12', 'v13')
    A(f'''s_lshr_b32 s84, s87, 1
s_mul_i32 s84, s84, {2*KRSZ}
s_lshl_b32 s90, s86, 6
s_add_u32 s84, s84, s90
s_add_u32 s84, s84, {S_KREV + 480}
v_and_b32 v4, 15, v1
v_lshrrev_b32 v5, 4, v1
v_lshlrev_b32 v6, 5, v4
v_lshlrev_b32 v7, 4, v5
v_sub_u32 v3, v7, v6
v_add_u32 v3, s84, v3
v_lshl_add_u32 v2, v4, 1, v7
v_and_b32 v6, 1, v4
v_xor_b32 v6, 1, v6
v_mul_u32_u24 v6, 4222, v6
v_add_u32 v2, v2, v6
s_add_u32 s84, s91, 2
s_add_u32 s84, s84, s90
v_add_u32 v2, s84, v2''')
    for i in range(32): A(f'v_accvgpr_write_b32 a{i}, 0')
    SETS = [('v', 32), ('a', 32)]
    def fr(st, kind, idx, lo=0, n=4):
        p, b = SETS[st]
        r0 = b + kind * 32 + idx * 4 + lo
        return f'{p}[{r0}:{r0+n-1}]'
    def loads(i, st):
        r = 2 * i
        out = []
        for a2 in range(4):
            out.append(f'v_add_u32 v{8+a2}, {64*r + 1024*a2}, v2')
        for a in range(8):
            o = 128 * (a & 1)
            out.append(f'ds_read2_b32 {fr(st,0,a,0,2)}, v{8+(a>>1)} offset0:{o} offset1:{o+1}')
            out.append(f'ds_read2_b32 {fr(st,0,a,2,2)}, v{8+(a>>1)} offset0:{o+2} offset1:{o+3}')
            out.append(f'ds_read_b128 {fr(st,1,a)}, v3 offset:{512*(7-a) + 64*r}')
        return out
    def acc(q): return f'a[{4*q}:{4*q+3}]'
    A(f'''v_add_u32 v8, 4096, v2
v_subrev_u32 v8, s90, v8
v_subrev_u32 v9, s90, v3
ds_read2_b32 v[12:13], v8 offset0:0 offset1:1
ds_read2_b32 v[14:15], v8 offset0:2 offset1:3
ds_read_b128 v[16:19], v9 offset:4096''')
    for x in loads(0, 0): A(x)
    import gen_g
    for i in range(4):
        st = i & 1
        A('s_waitcnt lgkmcnt(0)')
        mf = []
        for a in range(8):
            for b in range(8 - a):
                mf.append(f'v_mfma_f32_16x16x32_bf16 {acc(a+b)}, {fr(st,0,a)}, {fr(st,1,b)}, {acc(a+b)}')
        gen_g.weave(A, mf, loads(i + 1, 1 - st) if i < 3 else [], gaps=28)
        if i == 0:
            labx = uid('CX')
            A(f's_cmp_lg_u32 s86, 0\ns_cbranch_scc1 {labx}')
            for a in range(1, 8):
                A(f'v_mfma_f32_16x16x32_bf16 {acc(a-1)}, {fr(st,0,a)}, v[16:19], {acc(a-1)}')
            A(f'v_mfma_f32_16x16x32_bf16 {acc(7)}, v[12:15], v[16:19], {acc(7)}')
            A.label(labx)
    stamp(6)
    A(f'''s_lshl_b32 s84, s87, 12
s_add_u32 s84, s84, {S_RED}
v_lshlrev_b32 v8, 4, v1
v_add_u32 v9, s84, v8
s_xor_b32 s84, s87, 1
s_lshl_b32 s84, s84, 12
s_add_u32 s84, s84, {S_RED}
v_add_u32 v10, s84, v8
s_cmp_eq_u32 s86, 0
s_cselect_b64 vcc, -1, 0''')
    for i in range(16):
        A(f'''v_accvgpr_read_b32 v{64+i}, a{i}
v_accvgpr_read_b32 v{80+i}, a{16+i}''')
    for i in range(16):
        A(f'''v_cndmask_b32 v{32+i}, v{64+i}, v{80+i}, vcc
v_cndmask_b32 v{48+i}, v{80+i}, v{64+i}, vcc''')
    for q in range(4):
        A(f'ds_write_b128 v9, v[{32+4*q}:{35+4*q}] offset:{1024*q}')
    A(f'''v_lshlrev_b32 v11, 3, v5
v_lshl_add_u32 v11, v4, 5, v11
s_lshl_b32 s84, s86, 11
v_add_u32 v11, s84, v11
s_add_u32 s84, s91, 64
v_add_u32 v14, s84, v11''')
    for q in range(4):
        A(f'ds_read_b64 v[{64+2*q}:{65+2*q}], v14 offset:{512*q}')
    lds_sync('s89', 10, 'v12', 'v13')
    for q in range(4):
        A(f'ds_read_b128 v[{32+4*q}:{35+4*q}], v10 offset:{1024*q}')
    A('s_waitcnt vmcnt(0) lgkmcnt(0)')
    for q in range(4):
        for h in range(2):
            y0, y1 = f'v{48+4*q+2*h}', f'v{49+4*q+2*h}'
            p0, p1 = f'v{32+4*q+2*h}', f'v{33+4*q+2*h}'
            u = f'v{64+2*q+h}'
            A(f'''v_add_f32 {y0}, {y0}, {p0}
v_add_f32 {y1}, {y1}, {p1}
v_cvt_pk_bf16_f32 {y0}, {y0}, {y1}
v_lshlrev_b32 {p0}, 16, {u}
v_and_b32 {p1}, 0xffff0000, {u}
v_mul_f32 {p0}, {p0}, v99
v_mul_f32 {p1}, {p1}, v99
v_cvt_pk_bf16_f32 {p0}, {p0}, {p1}
v_lshlrev_b32 {y1}, 16, {y0}
v_and_b32 {y0}, 0xffff0000, {y0}
v_lshlrev_b32 {p1}, 16, {p0}
v_and_b32 {p0}, 0xffff0000, {p0}
v_add_f32 {y1}, {y1}, {p1}
v_add_f32 {y0}, {y0}, {p0}
v_cvt_pk_bf16_f32 {u}, {y1}, {y0}''')
        A(f'buffer_store_dwordx2 v[{64+2*q}:{65+2*q}], v11, {srd(R_B)}, 0 offen offset:{512*q} sc1')
    lds_nonce('v12', 14)
    lab = uid('ASIG')
    A(f'''s_waitcnt vmcnt(0)
v_mov_b32 v12, {C_S2}
v_mov_b32 v13, 1
s_mov_b64 exec, 1
ds_add_rtn_u32 v13, v12, v13
s_mov_b64 exec, -1
s_waitcnt lgkmcnt(0)
v_readfirstlane_b32 s84, v13
s_cmp_lg_u32 s84, 3
s_cbranch_scc1 {lab}''')
    flag_set(2, 'v3', 4)
    A.label(lab)

def build(with_g=True):
    import gen_g
    G = sys.modules[__name__]
    prologue()
    vm = gen_g.VM(A)
    A('s_cmp_lt_u32 s3, 4\ns_cbranch_scc1 L_GPATH')
    A('s_waitcnt lgkmcnt(0)\ns_barrier')
    if SPRIO: A(f's_setprio {SPRIO}')
    stamp(0)
    labx = uid('SX')
    A(f's_cmp_lt_u32 s2, {NROLE}\ns_cbranch_scc1 {labx}\ns_cmp_lg_u32 s3, 5\ns_cbranch_scc1 L_END')
    get_nonce('v60', 62)
    A(f'v_mov_b32 v60, {C_NONCE}\nds_write_b64 v60, v[62:63]\ns_waitcnt lgkmcnt(0)\ns_branch L_END')
    A.label(labx)
    s_param_loads()
    labn0 = uid('NS')
    A(f's_cmp_lg_u32 s3, 5\ns_cbranch_scc1 {labn0}')
    get_nonce('v60', 62)
    A(f'v_mov_b32 v60, {C_NONCE}\nds_write_b64 v60, v[62:63]')
    A.label(labn0)
    kgen()
    stamp(4)
    conv()
    stamp(7)
    A('s_branch L_END')
    A.label('L_GPATH')
    ln_loads(False)
    gen_g.g_early(G)
    labw = uid('NW')
    A(f's_cmp_lt_u32 s2, {NROLE}\ns_cbranch_scc1 {labw}\ns_mov_b32 s{R_A+2}, 0')
    A.label(labw)
    for st in range(3): gen_g.w_dma(G, vm, st)
    A('s_waitcnt lgkmcnt(0)\ns_barrier')
    if GPRIO: A(f's_setprio {GPRIO}')
    stamp(0)
    ln_stage()
    stamp(1)
    A(f's_cmp_ge_u32 s2, {NROLE}\ns_cbranch_scc1 L_END')
    vm.drain()
    gen_g.gemm1(G, vm)
    gen_g.gemm2(G, vm)
    flush2()
    A.label('L_END')
    A('s_endpgm')
    A.label('L_CODE_END')
    A.pad()
    hdr = f'''; fused LN + S4 conv + bilinear GLU kernel (generated by dev/gen.py)
; @launch grid=({NWG},1,1) block=(512,1,1) lds={LDS_SZ + (1024 if PROF else 0)}
.amdgcn_target "amdgcn-amd-amdhsa--gfx950"
.text
.globl {KN}
.p2align 8
.type {KN},@function
{KN}:
'''
    ftr = f'''.section .rodata,"a"
.p2align 6
.amdhsa_kernel {KN}
  .amdhsa_next_free_vgpr 256
  .amdhsa_next_free_sgpr 102
  .amdhsa_accum_offset 128
  .amdhsa_group_segment_fixed_size 0
  .amdhsa_kernarg_size 128
  .amdhsa_user_sgpr_count 2
  .amdhsa_user_sgpr_kernarg_segment_ptr 1
  .amdhsa_system_sgpr_workgroup_id_x 1
.end_amdhsa_kernel
'''
    return hdr + A.text() + ftr

if __name__ == '__main__':
    out = sys.argv[1]
    with_g = 'nog' not in sys.argv[2:]
    PROF = 'prof' in sys.argv[2:]
    for a in sys.argv[2:]:
        if a.startswith('sleep='): POLL_SLEEP = int(a[6:])
        if a == 'nopf': PREFETCH = False
        if a == 'pf': PREFETCH = 1
        if a == 'pfb': PREFETCH = 2
        if a.startswith('sdelay='): SDELAY = int(a[7:])
        if a == 'pf2': PF2 = True
        if a.startswith('codepf='): CODEPF = int(a[7:])
        if a.startswith('gprio='): GPRIO = int(a[6:])
        if a.startswith('sprio='): SPRIO = int(a[6:])
        if a == 'nolo': KLO = False
    open(out, 'w').write(build(with_g))
```

```python
import sys, math, struct
sys.path.insert(0, 'dev')
from asmkit import Asm

KN = 'parallel_sum__ssm_conv_s4__glu_gated_bilinear__prompt_kernel'
NWG = 256
NROLE = 224

XN_OFF, XNT_OFF, H_OFF, AT_OFF, FLG_OFF = 0, 2 << 20, 4 << 20, 12 << 20, 16 << 20
FLG_SZ = 5 * 256 * 128
XN_SZ = 2048 * 448 * 2
H_SZ = 2048 * 1792 * 2
G_RING = 0
S_PAR = 98304
S_KQ = S_PAR + 10240
S_KC = S_KQ + 16384
S_KREV = S_PAR + 35328
KRSZ = 4640
S_CNT = S_KREV + 4 * KRSZ
LNB = G_RING + 65536
H_STG = S_CNT + 128
LDS_SZ = H_STG + 10240
S_RED = S_PAR
S_U = S_PAR + 16384
C_G, C_S, C_P0, C_P1 = S_CNT, S_CNT + 4, S_CNT + 8, S_CNT + 12
C_H0, C_H1, C_NONCE, C_L2, C_S2, C_L3, C_S3 = S_CNT + 64, S_CNT + 68, S_CNT + 72, S_CNT + 80, S_CNT + 84, S_CNT + 88, S_CNT + 92
cg_base = 0
D_A = 56

def f2u(x): return struct.unpack('<I', struct.pack('<f', x))[0]
LOG2E = f2u(1.4426950408889634)
INV2PI_HI = struct.unpack('<f', struct.pack('<f', 1 / (2 * math.pi)))[0]
INV2PI_LO = f2u(1 / (2 * math.pi) - INV2PI_HI)
INV2PI_HI = f2u(INV2PI_HI)

A = Asm()
_uid = [0]
def uid(p):
    _uid[0] += 1
    return f'{p}_{_uid[0]}'

S_UU, S_ARE, S_AIM, S_BRE, S_BIM, S_CRE, S_CIM, S_LDT = 16, 18, 20, 22, 24, 26, 28, 30
S_DSK, S_BX, S_WG, S_WU, S_WD, S_OUT, S_DBG, S_WS = 32, 34, 36, 38, 40, 42, 44, 46
R_X, R_XN, R_XNT, R_DBG, R_A, R_B, R_C, R_D = 48, 52, 56, 60, 64, 68, 72, 76
def srd(r): return f's[{r}:{r+3}]'

def mk_srd(r, base, off, size):
    if off == 0:
        A(f's_mov_b32 s{r}, s{base}\ns_mov_b32 s{r+1}, s{base+1}')
    else:
        A(f's_add_u32 s{r}, s{base}, {off}\ns_addc_u32 s{r+1}, s{base+1}, 0')
    A(f's_mov_b32 s{r+2}, {size}\ns_mov_b32 s{r+3}, 0x00020000')

def wave_sum(v, t, s0=80):
    A(f'''v_add_f32_dpp {t}, {v}, {v} quad_perm:[1,0,3,2] row_mask:0xf bank_mask:0xf
v_add_f32_dpp {v}, {t}, {t} quad_perm:[2,3,0,1] row_mask:0xf bank_mask:0xf
v_add_f32_dpp {t}, {v}, {v} row_half_mirror row_mask:0xf bank_mask:0xf
v_add_f32_dpp {v}, {t}, {t} row_mirror row_mask:0xf bank_mask:0xf
v_readlane_b32 s{s0}, {v}, 0
v_readlane_b32 s{s0+1}, {v}, 16
v_readlane_b32 s{s0+2}, {v}, 32
v_readlane_b32 s{s0+3}, {v}, 48
v_mov_b32 {v}, s{s0}
v_add_f32 {v}, s{s0+1}, {v}
v_add_f32 {v}, s{s0+2}, {v}
v_add_f32 {v}, s{s0+3}, {v}''')

def lds_sync(cnt_addr, target, vt, vone, st=84):
    lp = uid('SYNC')
    A(f'''s_waitcnt lgkmcnt(0)
v_mov_b32 {vt}, {cnt_addr}
v_mov_b32 {vone}, 1
s_mov_b64 exec, 1
ds_add_u32 {vt}, {vone}
s_mov_b64 exec, -1''')
    A.label(lp)
    A(f'''ds_read_b32 {vone}, {vt}
s_waitcnt lgkmcnt(0)
v_readfirstlane_b32 s{st}, {vone}
s_cmp_ge_u32 s{st}, {target}
s_cbranch_scc0 {lp}''')

def dbg_add(idx_sgpr_or_imm, vt, vone):
    if isinstance(idx_sgpr_or_imm, int):
        A(f'v_mov_b32 {vt}, {idx_sgpr_or_imm*4}')
    else:
        A(f'v_mov_b32 {vt}, {idx_sgpr_or_imm}')
    A(f'''v_mov_b32 {vone}, 1
s_mov_b64 exec, 1
buffer_atomic_add {vone}, {vt}, {srd(R_DBG)}, 0 offen sc1
s_mov_b64 exec, -1''')

_fl = [0]
POLL_SLEEP = 2
PREFETCH = 1
GPRIO = 3
SPRIO = 0
KLO = False
CODEPF = 0
SDELAY = 4
PF2 = False
R_FLG = 8
def get_nonce(vt, vv):
    lp = uid('NONCE')
    A(f'v_mov_b32 {vt}, 0')
    A.label(lp)
    A(f'''buffer_load_dwordx2 v[{vv}:{vv+1}], {vt}, {srd(R_DBG)}, 0 offen sc0 sc1
s_waitcnt vmcnt(0)
v_readfirstlane_b32 s12, v{vv}
v_readfirstlane_b32 s13, v{vv+1}
s_cmp_lg_u32 s12, 0
s_cbranch_scc1 {lp}_ok
s_sleep 4
s_branch {lp}''')
    A.label(lp + '_ok')

def lds_nonce(vt, vv):
    lp = uid('LNON')
    A(f'v_mov_b32 {vt}, {C_NONCE}')
    A.label(lp)
    A(f'''ds_read_b64 v[{vv}:{vv+1}], {vt}
s_waitcnt lgkmcnt(0)
v_readfirstlane_b32 s12, v{vv}
v_readfirstlane_b32 s13, v{vv+1}
s_cmp_lg_u32 s12, 0
s_cbranch_scc0 {lp}''')

def flag_wait(setups, vi, vv, vt, leader=0, st=84):
    lp0 = uid('POLL')
    flag = S_CNT + 16 + 4 * _fl[0]; _fl[0] += 1
    assert _fl[0] <= 12
    A(f'v_mov_b32 {vt}, {flag}')
    A(f's_cmp_lg_u32 s3, {leader}\ns_cbranch_scc1 {lp0}_w')
    for setup in setups:
        lp = uid('PL')
        setup()
        A(f'v_cmp_le_u32 vcc, {5*256}, {vi}\ns_mov_b64 s[14:15], vcc\nv_lshlrev_b32 {vi}, 7, {vi}')
        A.label(lp)
        A(f'''buffer_load_dwordx2 v[{vv}:{vv+1}], {vi}, {srd(R_FLG)}, 0 offen sc0 sc1
s_waitcnt vmcnt(0)
v_cmp_eq_u32 vcc, s12, v{vv}
v_cmp_eq_u32 s[82:83], s13, v{vv+1}
s_and_b64 vcc, vcc, s[82:83]
s_or_b64 vcc, vcc, s[14:15]
s_cmp_eq_u64 vcc, -1
s_cbranch_scc1 {lp}_ok
s_sleep {POLL_SLEEP}
s_branch {lp}''')
        A.label(lp + '_ok')
    A(f'v_mov_b32 v{vv}, 1\nds_write_b32 {vt}, v{vv}\ns_branch {lp0}_done')
    A.label(lp0 + '_w')
    A(f'''ds_read_b32 v{vv}, {vt}
s_waitcnt lgkmcnt(0)
v_readfirstlane_b32 s{st}, v{vv}
s_cmp_eq_u32 s{st}, 1
s_cbranch_scc1 {lp0}_done
s_sleep 1
s_branch {lp0}_w''')
    A.label(lp0 + '_done')

def flag_set(phase, vt, vv):
    A(f'''s_add_u32 s82, s2, {phase*256}
s_lshl_b32 s82, s82, 7
v_mov_b32 {vt}, s82
v_mov_b32 v{vv}, s12
v_mov_b32 v{vv+1}, s13
s_mov_b64 exec, 1
buffer_store_dwordx2 v[{vv}:{vv+1}], {vt}, {srd(R_FLG)}, 0 offen sc0 sc1
s_mov_b64 exec, -1''')

PROF = False
PROF_OFF = 32 << 20
def stamp(i):
    if not PROF: return
    A(f'''s_waitcnt lgkmcnt(0)
s_memrealtime s[94:95]
s_lshl_b32 s96, s2, 3
s_add_u32 s96, s96, s3
s_lshl_b32 s96, s96, 8
s_add_u32 s96, s96, {PROF_OFF + 8*i}
v_mov_b32 v25, s96
s_waitcnt lgkmcnt(0)
v_mov_b32 v26, s94
v_mov_b32 v27, s95
global_store_dwordx2 v25, v[26:27], s[{S_WS}:{S_WS+1}]''')

_st2 = []
def stamp2(i):
    if not PROF: return
    A(f'''s_memtime s[94:95]
s_lshl_b32 s96, s3, 8
s_add_u32 s96, s96, {LDS_SZ + 8*i}
v_mov_b32 v{60 if i < 10 else 12 if i < 28 else 14}, s96
s_waitcnt lgkmcnt(0)
v_mov_b32 v{61 if i < 10 else 13 if i < 28 else 15}, s94
ds_write_b32 v{60 if i < 10 else 12 if i < 28 else 14}, v{61 if i < 10 else 13 if i < 28 else 15}''')
    _st2.append(i)

def flush2():
    if not PROF: return
    A(f'''s_lshl_b32 s96, s3, 8
s_add_u32 s96, s96, {LDS_SZ}
v_lshlrev_b32 v14, 2, v1
v_add_u32 v15, s96, v14
ds_read_b32 v16, v15
s_lshl_b32 s96, s2, 3
s_add_u32 s96, s96, s3
s_lshl_b32 s96, s96, 8
s_add_u32 s96, s96, {PROF_OFF + (4<<20)}
v_add_u32 v14, s96, v14
s_waitcnt lgkmcnt(0)
global_store_dword v14, v16, s[{S_WS}:{S_WS+1}]''')

def prologue():
    A(f'''s_cmp_ge_u32 s2, {NWG}
s_cbranch_scc1 L_END
s_load_dwordx16 s[16:31], s[0:1], 0
s_load_dwordx16 s[32:47], s[0:1], 64
v_lshrrev_b32 v2, 6, v0
v_and_b32 v1, 63, v0
v_readfirstlane_b32 s3, v2
s_waitcnt lgkmcnt(0)''')
    if CODEPF:
        A(f'''s_getpc_b64 s[80:81]
s_and_b32 s80, s80, 0xffffff00
v_lshlrev_b32 v2, 7, v0
v_min_u32 v2, L_CODE_END-{KN}-4, v2
global_load_dword v127, v2, s[80:81]''')
    mk_srd(R_X, S_UU, 0, XN_SZ)
    mk_srd(R_XN, S_WS, XN_OFF, XN_SZ)
    mk_srd(R_XNT, S_WS, XNT_OFF, XN_SZ)
    mk_srd(R_DBG, S_DBG, 0, 256)
    mk_srd(R_FLG, S_WS, FLG_OFF, FLG_SZ)
    A(f'''s_mov_b32 s12, 0
s_mov_b32 s13, 0
s_cmp_lg_u32 s2, 0
s_cbranch_scc1 L_NONP
s_cmp_lg_u32 s3, 7
s_cbranch_scc1 L_NONP
s_memrealtime s[80:81]
s_waitcnt lgkmcnt(0)
s_or_b32 s80, s80, 1
v_mov_b32 v2, 0
v_mov_b32 v4, s80
v_mov_b32 v5, s81
s_mov_b64 exec, 1
buffer_store_dwordx2 v[4:5], v2, {srd(R_DBG)}, 0 offen sc0 sc1
s_mov_b64 exec, -1''')
    A.label('L_NONP')
    A(f'''v_mov_b32 v2, {S_CNT}
v_mov_b32 v4, 0
v_mov_b32 v5, 0
v_mov_b32 v6, 0
v_mov_b32 v7, 0
ds_write_b128 v2, v[4:7]
ds_write_b128 v2, v[4:7] offset:16
ds_write_b128 v2, v[4:7] offset:32
ds_write_b128 v2, v[4:7] offset:48
ds_write_b128 v2, v[4:7] offset:64
ds_write_b128 v2, v[4:7] offset:80''')

def ln_loads(extra):
    A(f'''s_lshl_b32 s80, s2, 3
s_and_b32 s81, s3, 3
s_lshl_b32 s81, s81, 1
s_add_u32 s80, s80, s81
s_add_u32 s80, s80, {1792 if extra else 0}
s_mul_i32 s81, s80, 896
v_lshlrev_b32 v2, 4, v1
v_add_u32 v2, s81, v2
v_mov_b32 v3, 0x7f000000
v_cmp_gt_u32 vcc, 56, v1
v_cndmask_b32 v2, v3, v2, vcc
buffer_load_dwordx4 v[4:7], v2, {srd(R_X)}, 0 offen
buffer_load_dwordx4 v[36:39], v2, {srd(R_X)}, 0 offen offset:896''')

def ln_prep(wait):
    A(f'''s_and_b32 s81, s3, 3
s_lshl_b32 s81, s81, 2
s_add_u32 s81, s81, {LNB}
v_mul_u32_u24 v3, 144, v1
v_add_u32 v3, s81, v3
v_cmp_gt_u32 vcc, 56, v1
v_mov_b32 v24, {f2u(1.0 / 448.0)}
v_mov_b32 v25, 0x43e00000
s_waitcnt vmcnt({wait})''')

def ln_extra():
    lab = uid('LNX')
    A(f's_cmp_ge_u32 s2, 32\ns_cbranch_scc1 {lab}')
    ln_prep(14)
    ln_rows((4, 36), '0', 9216)
    A(f'''s_waitcnt lgkmcnt(0)
v_mov_b32 v4, {C_L2}
v_mov_b32 v5, 1
s_mov_b64 exec, 1
ds_add_u32 v4, v5
s_mov_b64 exec, -1''')
    A.label(lab)

def ln_rows(srcs, soff, lnb_off):
    inv448 = f2u(1.0 / 448.0)
    for row in range(2):
        S = srcs[row]
        for i in range(4):
            A(f'v_lshlrev_b32 v{8+2*i}, 16, v{S+i}\nv_and_b32 v{9+2*i}, 0xffff0000, v{S+i}')
        A('''v_add_f32 v16, v8, v9
v_add_f32 v17, v10, v11
v_add_f32 v18, v12, v13
v_add_f32 v19, v14, v15
v_add_f32 v16, v16, v17
v_add_f32 v18, v18, v19
v_add_f32 v16, v16, v18''')
        wave_sum('v16', 'v17')
        A(f'''v_mul_f32 v17, v16, v24
v_fma_f32 v18, -v17, v25, v16
v_fma_f32 v17, v18, v24, v17''')
        A('v_mov_b32 v18, 0')
        for i in range(8):
            A(f'v_sub_f32 v19, v{8+i}, v17\nv_fmac_f32 v18, v19, v19')
        A('v_mov_b32 v19, 0\nv_cndmask_b32 v18, v19, v18, vcc')
        wave_sum('v18', 'v19')
        A(f'''v_mul_f32 v19, v18, v24
v_fma_f32 v20, -v19, v25, v18
v_fma_f32 v19, v20, v24, v19
v_cvt_pk_bf16_f32 v17, v17, v19
v_and_b32 v19, 0xffff0000, v17
v_lshlrev_b32 v17, 16, v17
v_add_f32 v19, {f2u(1e-5)}, v19
v_cvt_pk_bf16_f32 v19, v19, v19
v_lshlrev_b32 v19, 16, v19
v_sqrt_f32 v19, v19
v_cvt_pk_bf16_f32 v19, v19, v19
v_lshlrev_b32 v19, 16, v19
v_rcp_f32 v19, v19''')
        O = 20 if row == 0 else 40
        for i in range(4):
            A(f'''v_sub_f32 v{8+2*i}, v{8+2*i}, v17
v_sub_f32 v{9+2*i}, v{9+2*i}, v17
v_cvt_pk_bf16_f32 v{S+i}, v{8+2*i}, v{9+2*i}
v_lshlrev_b32 v{8+2*i}, 16, v{S+i}
v_and_b32 v{9+2*i}, 0xffff0000, v{S+i}
v_mul_f32 v{8+2*i}, v{8+2*i}, v19
v_mul_f32 v{9+2*i}, v{9+2*i}, v19
v_cvt_pk_bf16_f32 v{O+i}, v{8+2*i}, v{9+2*i}''')
        A(f'buffer_store_dwordx4 v[{O}:{O+3}], v2, {srd(R_XN)}, {soff} offen offset:{896*row} sc1')
        for i in range(4):
            A(f'ds_write_b16 v3, v{O+i} offset:{lnb_off+32*i+2*row}\nds_write_b16_d16_hi v3, v{O+i} offset:{lnb_off+32*i+16+2*row}')

def ln_stage():
    global cg_base
    ln_prep(12)
    stamp2(0)
    ln_rows((4, 36), '0', 0)
    stamp2(1)
    cg_base += 1
    lds_sync(C_G, 4 * cg_base, 'v4', 'v5')
    stamp2(3)
    A(f'''v_lshrrev_b32 v3, 3, v0
v_mul_u32_u24 v3, 144, v3
v_and_b32 v4, 7, v0
v_lshl_add_u32 v3, v4, 4, v3
v_add_u32 v3, {LNB}, v3
ds_read_b128 v[4:7], v3
ds_read_b128 v[8:11], v3 offset:4608
v_lshlrev_b32 v3, 4, v0
s_mul_i32 s81, s2, 7168
v_add_u32 v3, s81, v3
v_mov_b32 v20, 0x7f000000
v_cmp_gt_u32 vcc, 192, v0
v_add_u32 v21, 4096, v3
v_cndmask_b32 v21, v20, v21, vcc
s_waitcnt lgkmcnt(0)
buffer_store_dwordx4 v[4:7], v3, {srd(R_XNT)}, 0 offen sc1
buffer_store_dwordx4 v[8:11], v21, {srd(R_XNT)}, 0 offen sc1''')
    stamp2(4)
    lds_nonce('v4', 6)
    def last_sets(cnt, phase):
        lab = uid('LS')
        A(f'''v_mov_b32 v4, {cnt}
v_mov_b32 v5, 1
s_mov_b64 exec, 1
ds_add_rtn_u32 v5, v4, v5
s_mov_b64 exec, -1
s_waitcnt lgkmcnt(0)
v_readfirstlane_b32 s84, v5
s_cmp_lg_u32 s84, 3
s_cbranch_scc1 {lab}''')
        flag_set(phase, 'v4', 6)
        A.label(lab)
    A('s_waitcnt vmcnt(2)')
    last_sets(C_L2, 0)
    A('s_waitcnt vmcnt(0)')
    last_sets(C_L3, 4)
    stamp2(5)
    cg_base += 1
    lds_sync(C_G, 4 * cg_base, 'v4', 'v5')
    stamp2(6)

XS_L = [(0, 1, 2), (256, 2, 4), (512, 4, 256), (1024, 256, 512)]
ROWS_L = [XS_L[p][0] + XS_L[p][1] * (k & 1) + XS_L[p][2] * (k >> 1) for p in range(4) for k in range(8)]
ROWS_OK = [True] * 8 + [k < 4 for k in range(8)] + [k < 4 for k in range(8)] + [k < 5 for k in range(8)]
S_TAB = S_KREV - 2048

def s_param_loads():
    A(f'''s_sub_u32 s87, s3, 4
s_lshr_b32 s85, s87, 1
s_lshl_b32 s84, s2, 1
s_add_u32 s85, s85, s84
s_and_b32 s86, s87, 1
s_lshl_b32 s84, s85, 9
s_lshl_b32 s88, s86, 8
s_add_u32 s84, s84, s88
v_lshlrev_b32 v98, 1, v1
v_add_u32 v98, s84, v98
s_lshl_b32 s84, s85, 1
v_mov_b32 v99, s84''')
    for k, b in enumerate((S_ARE, S_AIM, S_BRE, S_BIM, S_CRE, S_CIM)):
        A(f'global_load_ushort v{100+2*k}, v98, s[{b}:{b+1}]\nglobal_load_ushort v{101+2*k}, v98, s[{b}:{b+1}] offset:128')
    A(f'global_load_ushort v112, v99, s[{S_LDT}:{S_LDT+1}]\nglobal_load_ushort v113, v99, s[{S_DSK}:{S_DSK+1}]')

def interleave(streams):
    out = []
    n = max(len(s) for s in streams)
    for i in range(n):
        for s in streams:
            if i < len(s): out.append(s[i])
    return out

def l2_prefetch(which):
    A(f'''s_and_b32 s92, s2, 7
s_lshr_b32 s93, s2, 3
s_mul_i32 s94, s93, 37
s_lshr_b32 s94, s94, 8
s_mul_i32 s95, s94, 7
s_sub_u32 s95, s93, s95
s_and_b32 s96, s92, 1
s_mul_i32 s96, s96, 7
s_add_u32 s96, s96, s95''')
    if which == 0:
        A(f'''s_mul_i32 s97, s94, 112
s_mul_i32 s98, s87, 28
s_add_u32 s97, s97, s98
v_lshrrev_b32 v6, 1, v1
v_min_u32 v6, 27, v6
v_add_u32 v6, s97, v6
v_mul_u32_u24 v6, 3584, v6
v_and_b32 v7, 1, v1
v_lshl_add_u32 v6, v7, 7, v6
s_lshl_b32 s97, s96, 8
v_add_u32 v6, s97, v6
global_load_dword v96, v6, s[{S_WG}:{S_WG+1}]
global_load_dword v97, v6, s[{S_WU}:{S_WU+1}]''')
    else:
        A(f'''s_mul_i32 s97, s94, 448
s_mul_i32 s98, s87, 112
s_add_u32 s97, s97, s98
v_min_u32 v6, 55, v1
v_add_u32 v6, s97, v6
v_mul_u32_u24 v6, 896, v6
s_lshl_b32 s97, s95, 7
v_add_u32 v6, s97, v6
global_load_dword v98, v6, s[{S_WD}:{S_WD+1}]
v_add_u32 v6, {56*896}, v6
global_load_dword v100, v6, s[{S_WD}:{S_WD+1}]''')

def s_precompute():
    A(f'''s_lshr_b32 s84, s87, 1
s_mul_i32 s84, s84, 2816
s_add_u32 s84, s84, {S_KC}
s_cmp_eq_u32 s86, 0
s_cselect_b64 vcc, -1, 0
v_and_b32 v2, 31, v1
v_lshlrev_b32 v2, 3, v2
v_lshrrev_b32 v6, 5, v1
v_cmp_eq_u32 s[92:93], 0, v6''')
    BIG = 4096
    def lrow(r): return ROWS_L[r] if ROWS_OK[r] else BIG
    for v in range(8):
        c = [[lrow(16 * nh + 8 * (v >> 2) + 4 * hf + (v & 3)) for hf in range(2)] for nh in range(2)]
        t = 32 + 4 * v
        A(f'''v_mov_b32 v{t}, {c[0][0]}
v_mov_b32 v{t+1}, {c[1][0]}
v_cndmask_b32 v{t}, v{t+1}, v{t}, vcc
v_mov_b32 v{t+1}, {c[0][1]}
v_mov_b32 v{t+2}, {c[1][1]}
v_cndmask_b32 v{t+1}, v{t+2}, v{t+1}, vcc
v_cndmask_b32 v{t}, v{t+1}, v{t}, s[92:93]
v_add_u32 v{t}, v{t}, v2
v_cvt_f32_u32 v{t+1}, v{t}
v_lshrrev_b32 v{t+1}, 16, v{t+1}
v_subrev_u32 v{t+1}, 17024, v{t+1}''')
    for v in range(8):
        t = 32 + 4 * v
        A(f'''v_cmp_gt_u32 vcc, 256, v{t}
v_cndmask_b32 v{t+1}, v{t+1}, v{t}, vcc
v_cmp_lt_u32 vcc, 2048, v{t}
v_mov_b32 v{t+2}, 700
v_cndmask_b32 v{t+1}, v{t+1}, v{t+2}, vcc
v_lshlrev_b32 v{t+1}, 2, v{t+1}
v_add_u32 v{t+1}, s84, v{t+1}
v_accvgpr_write_b32 a{96+v}, v{t+1}''')
    A(f'''s_mul_i32 s91, s86, 1160
v_add_u32 v2, s91, v1
v_mov_b32 v6, 701''')
    for it in range(19):
        t = 8 + 4 * (it % 6)
        A(f'''v_sub_u32 v{t}, {2063 - 64*it}, v2
v_cvt_f32_i32 v{t+1}, v{t}
v_cvt_pk_bf16_f32 v{t+1}, v{t+1}, v{t+1}
v_and_b32 v{t+1}, 0xffff, v{t+1}
v_subrev_u32 v{t+1}, 17024, v{t+1}
v_cmp_gt_u32 vcc, 256, v{t}
v_cndmask_b32 v{t+1}, v{t+1}, v{t}, vcc
v_cmp_gt_u32 vcc, 2048, v{t}
v_cndmask_b32 v{t+1}, v6, v{t+1}, vcc
v_lshlrev_b32 v{t+1}, 2, v{t+1}
v_add_u32 v{t+1}, s84, v{t+1}
v_accvgpr_write_b32 a{104+it}, v{t+1}''')
    A(f'''s_add_u32 s84, s84, 2804
v_mov_b32 v6, s84
v_mov_b32 v7, 0
ds_write_b32 v6, v7''')

def kgen():
    A('s_waitcnt vmcnt(0)')
    for k in range(14):
        A(f'v_lshlrev_b32 v{100+k}, 16, v{100+k}')
    A(f'''v_mov_b32 v2, {LOG2E}
v_mul_f32 v112, v112, v2
v_exp_f32 v112, v112
v_cvt_pk_bf16_f32 v112, v112, v112
v_lshlrev_b32 v112, 16, v112
s_mul_i32 s84, s87, 2560
s_add_u32 s84, s84, {S_PAR}
v_lshlrev_b32 v3, 2, v1
v_add_u32 v3, s84, v3
v_mov_b32 v4, {INV2PI_HI}
v_mov_b32 v5, {INV2PI_LO}''')
    for h in range(2):
        are, aim, bre, bim, cre, cim = [f'v{100+2*k+h}' for k in range(6)]
        A(f'''v_mul_f32 {are}, v112, {are}
v_mul_f32 {aim}, v112, {aim}
v_mul_f32 {bre}, v112, {bre}
v_mul_f32 {bim}, v112, {bim}
v_mul_f32 v6, {are}, v2
v_mul_f32 v7, {aim}, v4
v_fma_f32 v8, {aim}, v4, -v7
v_fma_f32 v8, {aim}, v5, v8
v_and_b32 v9, 0xffffff00, v7
v_sub_f32 v7, v7, v9
v_add_f32 v7, v7, v8
v_mul_f32 v10, {cre}, {bre}
v_fma_f32 v10, -{cim}, {bim}, v10
v_mul_f32 v11, {cre}, {bim}
v_fma_f32 v11, {cim}, {bre}, v11
ds_write_b32 v3, v6 offset:{256*h}
ds_write_b32 v3, v9 offset:{512+256*h}
ds_write_b32 v3, v7 offset:{1024+256*h}
ds_write_b32 v3, v10 offset:{1536+256*h}
ds_write_b32 v3, v11 offset:{2048+256*h}''')
    if PREFETCH == 1: l2_prefetch(0)
    s_precompute()
    A(f's_mul_i32 s84, s87, 2560\ns_add_u32 s84, s84, {S_PAR}')
    A('v_lshrrev_b32 v2, 4, v1\nv_mov_b32 v4, 0\nv_mov_b32 v5, 1.0\nv_mov_b32 v6, 2.0')
    for p in range(1, 4):
        A(f'''v_cmp_eq_u32 vcc, {p}, v2
v_mov_b32 v8, {f2u(float(XS_L[p][0]))}
v_cndmask_b32 v4, v4, v8, vcc
v_mov_b32 v8, {f2u(float(XS_L[p][1]))}
v_cndmask_b32 v5, v5, v8, vcc
v_mov_b32 v8, {f2u(float(XS_L[p][2]))}
v_cndmask_b32 v6, v6, v8, vcc''')
    A(f'''v_lshlrev_b32 v7, 6, v2
v_cvt_f32_u32 v7, v7
v_and_b32 v3, 15, v1
v_lshlrev_b32 v3, 2, v3
s_mul_i32 s90, s87, 5120
s_add_u32 s90, s90, {S_TAB}
v_mul_u32_u24 v8, 80, v2
v_add_u32 v8, v8, v3
v_add_u32 v8, s90, v8
v_add_u32 v3, s84, v3
v_and_b32 v9, 7, v1
v_lshlrev_b32 v9, 2, v9
v_bfe_u32 v10, v1, 3, 2
v_add_u32 v9, v9, v10
v_mul_u32_u24 v9, 80, v9
v_lshrrev_b32 v10, 5, v1
v_lshl_add_u32 v9, v10, 4, v9
v_add_u32 v9, s90, v9
v_mov_b32 v10, {f2u(8.0)}
v_mov_b32 v11, {f2u(16.0)}''')
    ACC = 112
    A('v_mov_b32 v99, v113')
    for i in range(16): A(f'v_mov_b32 v{ACC+i}, 0')
    if SDELAY:
        lpw = uid('SW')
        A(f'v_mov_b32 v12, {C_G}')
        A.label(lpw)
        A(f'''ds_read_b32 v13, v12
s_waitcnt lgkmcnt(0)
v_readfirstlane_b32 s88, v13
s_cmp_ge_u32 s88, {SDELAY}
s_cbranch_scc1 {lpw}_ok
s_sleep 2
s_branch {lpw}''')
        A.label(lpw + '_ok')
    def preads():
        A('''ds_read_b32 v12, v3
ds_read_b32 v13, v3 offset:512
ds_read_b32 v14, v3 offset:1024
ds_read_b32 v16, v3 offset:1536
ds_read_b32 v17, v3 offset:2048''')
    def ev(l, d, t, conj):
        return [f'v_mul_f32 v{t}, v13, {l}', f'v_mul_f32 v{d}, v12, {l}', f'v_fract_f32 v{t}, v{t}', f'v_exp_f32 v{d}, v{d}',
                f'v_fma_f32 v{t}, v14, {l}, v{t}', f'v_sin_f32 v{t+1}, v{t}', f'v_cos_f32 v{t}, v{t}',
                f'v_mul_f32 v{d+1}, {"-" if conj else ""}v{d}, v{t+1}', f'v_mul_f32 v{d}, v{d}, v{t}']
    def cmul(d, a, b, t):
        return [f'v_mul_f32 v{t}, v{a}, v{b}', f'v_mul_f32 v{t+1}, v{a}, v{b+1}',
                f'v_fma_f32 v{d}, -v{a+1}, v{b+1}, v{t}', f'v_fma_f32 v{d+1}, v{a+1}, v{b}, v{t+1}']
    def chain(base, R1, R2, t, first):
        ce = list(first); co = cmul(base + 2, base, R1, t + 2)
        for k in range(2, 8, 2): ce += cmul(base + 2 * k, base + 2 * (k - 2), R2, t)
        for k in range(3, 8, 2): co += cmul(base + 2 * k, base + 2 * (k - 2), R2, t + 2)
        return ce, [None] * len(first) + co
    def il(streams):
        return [x for x in interleave(streams) if x]
    acc = f'v[{ACC}:{ACC+15}]'
    def oreads():
        for kb in range(2):
            for arr in range(2):
                rr = kb * 8 + arr * 4
                A(f'ds_read_b128 a[{rr}:{rr+3}], v9 offset:{arr*2560 + kb*32}')
    def mfmas():
        return [f'v_mfma_f32_32x32x16_bf16 {acc}, a[{kb*8}:{kb*8+3}], a[{kb*8+4}:{kb*8+7}], {acc}' for kb in range(2)]
    for i in range(16): A(f'v_accvgpr_write_b32 a{i}, 0')
    A('s_waitcnt lgkmcnt(0)')
    preads()
    A('s_mov_b32 s88, 0')
    loop = uid('KG')
    A.label(loop)
    A('s_waitcnt lgkmcnt(0)')
    lab1 = uid('KGN')
    A(f's_cmp_eq_u32 s88, 0\ns_cbranch_scc1 {lab1}')
    oreads()
    A.label(lab1)
    evs = [ev('v4', 20, 64, True), ev('v5', 22, 66, True), ev('v6', 24, 68, True),
           ev('v7', 26, 70, False), ev('v10', 28, 72, False), ev('v11', 30, 74, False)]
    for x in interleave(evs): A(x)
    A('v_xor_b32 v17, 0x80000000, v17')
    cxe, cxo = chain(32, 22, 24, 64, cmul(32, 16, 20, 64))
    cye, cyo = chain(48, 28, 30, 68, ['v_mov_b32 v48, v26', 'v_mov_b32 v49, v27'])
    A('s_waitcnt lgkmcnt(0)')
    import gen_g
    gen_g.weave(A, mfmas(), il([cxe, cxo, cye, cyo]))
    A('v_add_u32 v3, 64, v3')
    preads()
    for k in range(8):
        A(f'''v_cvt_pk_bf16_f32 v{64+k}, v{32+2*k}, v{33+2*k}
v_cvt_pk_bf16_f32 v{72+k}, v{48+2*k}, v{49+2*k}''')
    for k in range(8):
        A(f'''ds_write_b32 v8, v{64+k} offset:{320*k}
ds_write_b32 v8, v{72+k} offset:{2560 + 320*k}''')
    A(f'''s_add_u32 s88, s88, 1
s_cmp_lt_u32 s88, 8
s_cbranch_scc1 {loop}
s_waitcnt lgkmcnt(0)''')
    oreads()
    A('s_waitcnt lgkmcnt(0)')
    for x in mfmas(): A(x)
    stamp(2)
    if PREFETCH: l2_prefetch(1)
    A(f'''s_lshl_b32 s84, s87, 12
s_add_u32 s84, s84, {S_KQ}
v_lshrrev_b32 v3, 5, v1
v_lshlrev_b32 v3, 9, v3
v_and_b32 v6, 31, v1
v_lshl_add_u32 v3, v6, 2, v3
v_add_u32 v6, s84, v3''')
    for v in range(16):
        A(f'ds_write_b32 v6, v{ACC+v} offset:{(8*(v>>2)+(v&3))*128}')
    A(f'''s_lshr_b32 s89, s87, 1
s_lshl_b32 s89, s89, 2
s_add_u32 s89, s89, {C_P0}''')
    lds_sync(C_S3, 4, 'v7', 'v8')
    A(f'''s_xor_b32 s84, s87, 1
s_lshl_b32 s84, s84, 12
s_add_u32 s84, s84, {S_KQ}
s_lshl_b32 s90, s86, 11
s_add_u32 s84, s84, s90
v_add_u32 v6, s84, v3
s_lshr_b32 s84, s87, 1
s_lshl_b32 s84, s84, 12
s_add_u32 s84, s84, {S_KC}''')
    for v in range(8):
        A(f'ds_read_b32 v{8+v}, v6 offset:{(8*(v>>2)+(v&3))*128}')
    A('s_cmp_eq_u32 s86, 0\ns_cselect_b64 vcc, -1, 0')
    for v in range(8):
        A(f'v_cndmask_b32 v{16+v}, v{ACC+8+v}, v{ACC+v}, vcc')
    for v in range(8):
        A(f'v_accvgpr_read_b32 v{33+4*v}, a{96+v}')
    A('s_waitcnt lgkmcnt(0)')
    for v in range(8):
        A(f'''v_add_f32 v{8+v}, v{8+v}, v{16+v}
v_cvt_pk_bf16_f32 v{8+v}, v{8+v}, v{8+v}
ds_write_b32 v{33+4*v}, v{8+v}''')
    lds_sync('s89', 2, 'v7', 'v8')
    stamp(3)
    NIT = 19
    A(f'''s_lshr_b32 s84, s87, 1
s_mul_i32 s90, s84, {2*KRSZ}
s_add_u32 s90, s90, {S_KREV}
s_mul_i32 s91, s86, 1160
v_add_u32 v2, s91, v1
v_lshlrev_b32 v3, 1, v2
v_add_u32 v3, s90, v3''')
    for it in range(NIT):
        A(f'v_accvgpr_read_b32 v{8+it}, a{104+it}')
    for it in range(NIT):
        A(f'ds_read_b32 v{32+it}, v{8+it}')
    for it in range(NIT):
        A(f's_waitcnt lgkmcnt({min(15, 2*it + NIT - 1 - it) if False else 0})' if it == 0 else '')
        if it == NIT - 1:
            A(f'v_cmp_gt_u32 vcc, {2320 - 64*(NIT-1)}, v2\ns_and_saveexec_b64 s[92:93], vcc')
        A(f'ds_write_b16 v3, v{32+it} offset:{128*it}')
        if it == NIT - 1:
            A('s_mov_b64 exec, s[92:93]')
    lds_sync(C_S, 4, 'v7', 'v8')

def conv():
    labn = uid('SN')
    A(f's_cmp_lg_u32 s3, 4\ns_cbranch_scc1 {labn}')
    lds_nonce('v2', 6)
    A.label(labn)
    lp0 = uid('LNA')
    flag = S_CNT + 16 + 4 * _fl[0]; _fl[0] += 1
    A(f'''v_mov_b32 v2, {flag}
s_cmp_lg_u32 s3, 4
s_cbranch_scc1 {lp0}_w
v_lshlrev_b32 v3, 7, v1''')
    A.label(lp0)
    for c in range(4):
        A(f's_mov_b32 s84, {4*256*128 + 64*128*c}\nbuffer_load_dwordx2 v[{8+2*c}:{9+2*c}], v3, {srd(R_FLG)}, s84 offen sc0 sc1')
    A('s_waitcnt vmcnt(0)\ns_mov_b64 s[14:15], -1')
    for c in range(4):
        A(f'''v_cmp_eq_u32 vcc, s12, v{8+2*c}
s_and_b64 s[14:15], s[14:15], vcc
v_cmp_eq_u32 vcc, s13, v{9+2*c}
s_and_b64 s[14:15], s[14:15], vcc''')
    A(f'''s_cmp_eq_u64 s[14:15], -1
s_cbranch_scc1 {lp0}_ok
s_sleep 2
s_branch {lp0}''')
    A.label(lp0 + '_ok')
    A(f'v_mov_b32 v6, 1\nds_write_b32 v2, v6\ns_branch {lp0}_done')
    A.label(lp0 + '_w')
    A(f'''ds_read_b32 v6, v2
s_waitcnt lgkmcnt(0)
v_readfirstlane_b32 s84, v6
s_cmp_eq_u32 s84, 1
s_cbranch_scc1 {lp0}_done
s_sleep 1
s_branch {lp0}_w''')
    A.label(lp0 + '_done')
    stamp(5)
    A(f'''s_lshl_b32 s84, s85, 12
s_add_u32 s84, s84, {AT_OFF}''')
    mk_srd(R_B, S_WS, 's84', 4096)
    A(f'''s_lshr_b32 s84, s87, 1
s_mul_i32 s91, s84, 8448
s_add_u32 s91, s91, {S_U}
s_lshl_b32 s90, s86, 11
s_add_u32 s90, s90, s91
s_lshl_b32 s84, s86, 7
v_add_u32 v8, s84, v1
v_mul_u32_u24 v8, 7168, v8
s_lshl_b32 s84, s85, 4
v_add_u32 v8, s84, v8
v_mov_b32 v9, 0''')
    for i in range(2):
        A(f's_add_u32 m0, s90, {64 + 1024*i}\ns_mov_b32 s84, {64*7168*i}\nbuffer_load_dwordx4 v8, {srd(R_XNT)}, s84 offen sc1 lds')
    A(f'''v_and_b32 v10, 15, v1
v_lshlrev_b32 v10, 2, v10
s_mul_i32 s84, s86, 4160
s_add_u32 s84, s84, s91
v_add_u32 v10, s84, v10
ds_write_b32 v10, v9
ds_write_b32 v10, v9 offset:4224
s_waitcnt vmcnt(0)''')
    lds_sync('s89', 4, 'v12', 'v13')
    A(f'''s_lshl_b32 s84, s86, 11
s_add_u32 s84, s84, s91
s_add_u32 s84, s84, 48
v_lshlrev_b32 v10, 4, v1
v_add_u32 v10, s84, v10''')
    for i in range(3):
        A(f'ds_read_b128 v[{16+8*i}:{19+8*i}], v10 offset:{1024*i}\nds_read_b32 v{20+8*i}, v10 offset:{1024*i+16}')
    A('s_waitcnt lgkmcnt(0)')
    for i in range(3):
        b = 16 + 8 * i
        for k in range(4):
            A(f'v_alignbit_b32 v{b+k}, v{b+k+1}, v{b+k}, 16')
        if i == 2:
            A(f'v_cmp_gt_u32 vcc, 2, v1\ns_and_saveexec_b64 s[92:93], vcc')
        A(f'ds_write_b128 v10, v[{b}:{b+3}] offset:{1024*i+4224}')
        if i == 2:
            A('s_mov_b64 exec, s[92:93]')
    lds_sync('s89', 6, 'v12', 'v13')
    A(f'''s_lshr_b32 s84, s87, 1
s_mul_i32 s84, s84, {2*KRSZ}
s_lshl_b32 s90, s86, 6
s_add_u32 s84, s84, s90
s_add_u32 s84, s84, {S_KREV + 480}
v_and_b32 v4, 15, v1
v_lshrrev_b32 v5, 4, v1
v_lshlrev_b32 v6, 5, v4
v_lshlrev_b32 v7, 4, v5
v_sub_u32 v3, v7, v6
v_add_u32 v3, s84, v3
v_lshl_add_u32 v2, v4, 1, v7
v_and_b32 v6, 1, v4
v_xor_b32 v6, 1, v6
v_mul_u32_u24 v6, 4222, v6
v_add_u32 v2, v2, v6
s_add_u32 s84, s91, 2
s_add_u32 s84, s84, s90
v_add_u32 v2, s84, v2''')
    for i in range(32): A(f'v_accvgpr_write_b32 a{i}, 0')
    SETS = [('v', 32), ('a', 32)]
    def fr(st, kind, idx, lo=0, n=4):
        p, b = SETS[st]
        r0 = b + kind * 32 + idx * 4 + lo
        return f'{p}[{r0}:{r0+n-1}]'
    def loads(i, st):
        r = 2 * i
        out = []
        for a2 in range(4):
            out.append(f'v_add_u32 v{8+a2}, {64*r + 1024*a2}, v2')
        for a in range(8):
            o = 128 * (a & 1)
            out.append(f'ds_read2_b32 {fr(st,0,a,0,2)}, v{8+(a>>1)} offset0:{o} offset1:{o+1}')
            out.append(f'ds_read2_b32 {fr(st,0,a,2,2)}, v{8+(a>>1)} offset0:{o+2} offset1:{o+3}')
            out.append(f'ds_read_b128 {fr(st,1,a)}, v3 offset:{512*(7-a) + 64*r}')
        return out
    def acc(q): return f'a[{4*q}:{4*q+3}]'
    A(f'''v_add_u32 v8, 4096, v2
v_subrev_u32 v8, s90, v8
v_subrev_u32 v9, s90, v3
ds_read2_b32 v[12:13], v8 offset0:0 offset1:1
ds_read2_b32 v[14:15], v8 offset0:2 offset1:3
ds_read_b128 v[16:19], v9 offset:4096''')
    for x in loads(0, 0): A(x)
    import gen_g
    for i in range(4):
        st = i & 1
        A('s_waitcnt lgkmcnt(0)')
        mf = []
        for a in range(8):
            for b in range(8 - a):
                mf.append(f'v_mfma_f32_16x16x32_bf16 {acc(a+b)}, {fr(st,0,a)}, {fr(st,1,b)}, {acc(a+b)}')
        gen_g.weave(A, mf, loads(i + 1, 1 - st) if i < 3 else [], gaps=28)
        if i == 0:
            labx = uid('CX')
            A(f's_cmp_lg_u32 s86, 0\ns_cbranch_scc1 {labx}')
            for a in range(1, 8):
                A(f'v_mfma_f32_16x16x32_bf16 {acc(a-1)}, {fr(st,0,a)}, v[16:19], {acc(a-1)}')
            A(f'v_mfma_f32_16x16x32_bf16 {acc(7)}, v[12:15], v[16:19], {acc(7)}')
            A.label(labx)
    stamp(6)
    A(f'''s_lshl_b32 s84, s87, 12
s_add_u32 s84, s84, {S_RED}
v_lshlrev_b32 v8, 4, v1
v_add_u32 v9, s84, v8
s_xor_b32 s84, s87, 1
s_lshl_b32 s84, s84, 12
s_add_u32 s84, s84, {S_RED}
v_add_u32 v10, s84, v8
s_cmp_eq_u32 s86, 0
s_cselect_b64 vcc, -1, 0''')
    for i in range(16):
        A(f'''v_accvgpr_read_b32 v{64+i}, a{i}
v_accvgpr_read_b32 v{80+i}, a{16+i}''')
    for i in range(16):
        A(f'''v_cndmask_b32 v{32+i}, v{64+i}, v{80+i}, vcc
v_cndmask_b32 v{48+i}, v{80+i}, v{64+i}, vcc''')
    for q in range(4):
        A(f'ds_write_b128 v9, v[{32+4*q}:{35+4*q}] offset:{1024*q}')
    A(f'''v_lshlrev_b32 v11, 3, v5
v_lshl_add_u32 v11, v4, 5, v11
s_lshl_b32 s84, s86, 11
v_add_u32 v11, s84, v11
s_add_u32 s84, s91, 64
v_add_u32 v14, s84, v11''')
    for q in range(4):
        A(f'ds_read_b64 v[{64+2*q}:{65+2*q}], v14 offset:{512*q}')
    lds_sync('s89', 8, 'v12', 'v13')
    for q in range(4):
        A(f'ds_read_b128 v[{32+4*q}:{35+4*q}], v10 offset:{1024*q}')
    A('s_waitcnt vmcnt(0) lgkmcnt(0)')
    for q in range(4):
        for h in range(2):
            y0, y1 = f'v{48+4*q+2*h}', f'v{49+4*q+2*h}'
            p0, p1 = f'v{32+4*q+2*h}', f'v{33+4*q+2*h}'
            u = f'v{64+2*q+h}'
            A(f'''v_add_f32 {y0}, {y0}, {p0}
v_add_f32 {y1}, {y1}, {p1}
v_cvt_pk_bf16_f32 {y0}, {y0}, {y1}
v_lshlrev_b32 {p0}, 16, {u}
v_and_b32 {p1}, 0xffff0000, {u}
v_mul_f32 {p0}, {p0}, v99
v_mul_f32 {p1}, {p1}, v99
v_cvt_pk_bf16_f32 {p0}, {p0}, {p1}
v_lshlrev_b32 {y1}, 16, {y0}
v_and_b32 {y0}, 0xffff0000, {y0}
v_lshlrev_b32 {p1}, 16, {p0}
v_and_b32 {p0}, 0xffff0000, {p0}
v_add_f32 {y1}, {y1}, {p1}
v_add_f32 {y0}, {y0}, {p0}
v_cvt_pk_bf16_f32 {u}, {y1}, {y0}''')
        A(f'buffer_store_dwordx2 v[{64+2*q}:{65+2*q}], v11, {srd(R_B)}, 0 offen offset:{512*q} sc1')
    lds_nonce('v12', 14)
    lab = uid('ASIG')
    A(f'''s_waitcnt vmcnt(0)
v_mov_b32 v12, {C_S2}
v_mov_b32 v13, 1
s_mov_b64 exec, 1
ds_add_rtn_u32 v13, v12, v13
s_mov_b64 exec, -1
s_waitcnt lgkmcnt(0)
v_readfirstlane_b32 s84, v13
s_cmp_lg_u32 s84, 3
s_cbranch_scc1 {lab}''')
    flag_set(2, 'v3', 4)
    A.label(lab)

def build(with_g=True):
    import gen_g
    G = sys.modules[__name__]
    prologue()
    vm = gen_g.VM(A)
    A('s_cmp_lt_u32 s3, 4\ns_cbranch_scc1 L_GPATH')
    A('s_waitcnt lgkmcnt(0)\ns_barrier')
    if SPRIO: A(f's_setprio {SPRIO}')
    stamp(0)
    labx = uid('SX')
    A(f's_cmp_lt_u32 s2, {NROLE}\ns_cbranch_scc1 {labx}\ns_cmp_lg_u32 s3, 5\ns_cbranch_scc1 L_END')
    get_nonce('v60', 62)
    A(f'v_mov_b32 v60, {C_NONCE}\nds_write_b64 v60, v[62:63]\ns_waitcnt lgkmcnt(0)\ns_branch L_END')
    A.label(labx)
    s_param_loads()
    labn0 = uid('NS')
    A(f's_cmp_lg_u32 s3, 5\ns_cbranch_scc1 {labn0}')
    get_nonce('v60', 62)
    A(f'v_mov_b32 v60, {C_NONCE}\nds_write_b64 v60, v[62:63]')
    A.label(labn0)
    kgen()
    stamp(4)
    conv()
    stamp(7)
    A('s_branch L_END')
    A.label('L_GPATH')
    ln_loads(False)
    gen_g.g_early(G)
    labw = uid('NW')
    A(f's_cmp_lt_u32 s2, {NROLE}\ns_cbranch_scc1 {labw}\ns_mov_b32 s{R_A+2}, 0')
    A.label(labw)
    for st in range(3): gen_g.w_dma(G, vm, st)
    A('s_waitcnt lgkmcnt(0)\ns_barrier')
    if GPRIO: A(f's_setprio {GPRIO}')
    stamp(0)
    ln_stage()
    stamp(1)
    A(f's_cmp_ge_u32 s2, {NROLE}\ns_cbranch_scc1 L_END')
    vm.drain()
    gen_g.gemm1(G, vm)
    gen_g.gemm2(G, vm)
    flush2()
    A.label('L_END')
    A('s_endpgm')
    A.label('L_CODE_END')
    A.pad()
    hdr = f'''; Fused LayerNorm + S4 (diagonal SSM) causal convolution + bilinear GLU, single persistent launch.
; @launch grid=({NWG},1,1) block=(512,1,1) lds={LDS_SZ + (1024 if PROF else 0)}
.amdgcn_target "amdgcn-amd-amdhsa--gfx950"
.text
.globl {KN}
.p2align 8
.type {KN},@function
{KN}:
'''
    ftr = f'''.section .rodata,"a"
.p2align 6
.amdhsa_kernel {KN}
  .amdhsa_next_free_vgpr 256
  .amdhsa_next_free_sgpr 102
  .amdhsa_accum_offset 128
  .amdhsa_group_segment_fixed_size 0
  .amdhsa_kernarg_size 128
  .amdhsa_user_sgpr_count 2
  .amdhsa_user_sgpr_kernarg_segment_ptr 1
  .amdhsa_system_sgpr_workgroup_id_x 1
.end_amdhsa_kernel
'''
    return hdr + A.text() + ftr

if __name__ == '__main__':
    out = sys.argv[1]
    with_g = 'nog' not in sys.argv[2:]
    PROF = 'prof' in sys.argv[2:]
    for a in sys.argv[2:]:
        if a.startswith('sleep='): POLL_SLEEP = int(a[6:])
        if a == 'nopf': PREFETCH = False
        if a == 'pf': PREFETCH = 1
        if a == 'pfb': PREFETCH = 2
        if a.startswith('sdelay='): SDELAY = int(a[7:])
        if a == 'pf2': PF2 = True
        if a.startswith('codepf='): CODEPF = int(a[7:])
        if a.startswith('gprio='): GPRIO = int(a[6:])
        if a.startswith('sprio='): SPRIO = int(a[6:])
        if a == 'nolo': KLO = False
    open(out, 'w').write(build(with_g))
```

```python
from gen_g_v3 import VM, weave

XS = 49152

def g_early(G):
    A = G.A
    A(f'''s_and_b32 s80, s2, 7
s_lshr_b32 s81, s2, 3
s_mul_i32 s82, s81, 37
s_lshr_b32 s82, s82, 8
s_mul_i32 s83, s82, 7
s_sub_u32 s83, s81, s83
s_lshr_b32 s84, s80, 1
s_lshl_b32 s85, s84, 2
s_add_u32 s85, s85, s82
s_and_b32 s84, s80, 1
s_mul_i32 s86, s84, 7
s_add_u32 s86, s86, s83
s_lshl_b32 s87, s80, 2
s_add_u32 s87, s87, s82
s_mov_b32 s88, s83
s_cmp_lt_u32 s3, 2
s_cselect_b32 s{G.R_A}, s{G.S_WG}, s{G.S_WU}
s_cselect_b32 s{G.R_A+1}, s{G.S_WG+1}, s{G.S_WU+1}
s_mov_b32 s{G.R_A+2}, {448*3584}
s_mov_b32 s{G.R_A+3}, 0x00020000''')
    A(f'''v_lshrrev_b32 v26, 3, v1
v_and_b32 v27, 7, v1
v_lshrrev_b32 v28, 1, v27
v_bfe_u32 v29, v1, 4, 1
v_lshlrev_b32 v29, 1, v29
v_xor_b32 v28, v28, v29
v_and_b32 v27, 1, v27
v_lshl_add_u32 v28, v28, 1, v27
v_lshlrev_b32 v28, 4, v28
v_mul_u32_u24 v26, 3584, v26
v_add_u32 v30, v26, v28
s_lshl_b32 s80, s86, 8
s_and_b32 s81, s3, 1
s_mul_i32 s81, s81, {32*3584}
s_add_u32 s80, s80, s81
v_add_u32 v30, s80, v30
s_lshl_b32 s89, s3, 12''')

def w_dma_list(G, vm, gs, vo):
    A = G.A
    p, st = divmod(gs, 7)
    out = []
    for i in range(4):
        def f(i=i):
            A(f's_add_u32 m0, s89, {G.G_RING + (gs%3)*16384 + i*1024}\ns_mov_b32 s80, {(64*st + 8*i)*3584 + 128*p}')
            vm.issue(('W', gs), f'buffer_load_dwordx4 {vo}, {G.srd(G.R_A)}, s80 offen lds')
        out.append(f)
    return out

def w_dma(G, vm, gs, vo='v30'):
    for f in w_dma_list(G, vm, gs, vo): f()

def prod_idx(G, dst, tmp):
    G.A(f'''s_lshr_b32 s80, s87, 1
s_and_b32 s81, s80, 3
s_lshr_b32 s80, s80, 2
s_mul_i32 s81, s81, 56
s_lshl_b32 s80, s80, 1
s_add_u32 s80, s80, s81
s_add_u32 s80, s80, 256
v_lshrrev_b32 {dst}, 1, v1
v_lshlrev_b32 {dst}, 3, {dst}
v_and_b32 {tmp}, 1, v1
v_add_u32 {dst}, {dst}, {tmp}
v_add_u32 {dst}, s80, {dst}
v_mov_b32 {tmp}, 2000
v_cmp_gt_u32 vcc, 14, v1
v_cndmask_b32 {dst}, {tmp}, {dst}, vcc''')

def gemm1(G, vm):
    A = G.A
    def setup():
        A(f'''s_lshl_b32 s80, s85, 4
v_add_u32 v3, s80, v1
v_mov_b32 v6, 2000
v_cmp_gt_u32 vcc, 16, v1
v_cndmask_b32 v3, v6, v3, vcc''')
    G.flag_wait([setup], 'v3', 6, 'v2')
    G.stamp(2)
    A(f'''v_mov_b32 v2, v30
s_lshl_b32 s80, s85, 7
s_lshl_b32 s81, s3, 5
s_add_u32 s80, s80, s81
v_lshrrev_b32 v12, 3, v1
v_add_u32 v13, s80, v12
v_mul_u32_u24 v13, 896, v13
v_lshrrev_b32 v12, 4, v1
v_and_b32 v14, 7, v1
v_xor_b32 v12, v12, v14
v_lshl_add_u32 v3, v12, 4, v13
v_xor_b32 v12, 4, v12
v_lshl_add_u32 v4, v12, 4, v13''')
    def x_dma_list(gs):
        st = gs % 7
        out = []
        for i in range(4):
            def f(i=i):
                A(f's_add_u32 m0, s89, {G.G_RING + XS + (gs%3)*16384 + i*1024}\ns_mov_b32 s80, {8*i*896 + 128*st}')
                vm.issue(('X', gs), f'buffer_load_dwordx4 {"v3" if i % 2 == 0 else "v4"}, {G.srd(G.R_XN)}, s80 offen sc1 lds')
            out.append(f)
        return out
    for gs in range(3):
        for f in x_dma_list(gs): f()
    A(f'''v_mov_b32 v12, {G.C_NONCE}
ds_read_b64 v[14:15], v12
s_waitcnt lgkmcnt(0)
v_readfirstlane_b32 s12, v14
v_readfirstlane_b32 s13, v15''')
    A(f'''v_lshrrev_b32 v12, 4, v1
v_and_b32 v13, 15, v1
v_lshrrev_b32 v14, 2, v13
v_and_b32 v13, 3, v13
v_lshrrev_b32 v15, 1, v12
v_and_b32 v12, 1, v12
v_lshl_add_u32 v15, v15, 3, v14
v_lshlrev_b32 v15, 7, v15
v_lshl_add_u32 v15, v13, 3, v15
v_lshl_add_u32 v15, v12, 5, v15
v_lshrrev_b32 v14, 1, v14
s_and_b32 s80, s3, 1
v_xor_b32 v14, s80, v14
v_lshl_add_u32 v5, v14, 6, v15
v_add_u32 v5, {G.G_RING}, v5
v_and_b32 v12, 31, v1
v_lshrrev_b32 v13, 5, v1
v_bfe_u32 v14, v1, 1, 3
v_xor_b32 v13, v13, v14
v_lshlrev_b32 v12, 7, v12
s_lshr_b32 s80, s3, 1
s_lshl_b32 s80, s80, 13
s_add_u32 s80, s80, {G.G_RING + XS}
v_add_u32 v12, s80, v12''')
    for s in range(4):
        A(f'v_xor_b32 v14, {2*s}, v13\nv_lshl_add_u32 v{6+s}, v14, 4, v12')
    for i in range(128): A(f'v_accvgpr_write_b32 a{i}, 0')
    FR = [16, 32]
    def reads(gs, s, buf):
        r = FR[buf]
        sl = (gs % 3) * 16384
        out = []
        for m in range(2):
            off = sl + m * 8192 + s * 2048
            out.append(f'ds_read_b64_tr_b16 v[{r+4*m}:{r+4*m+1}], v5 offset:{off}')
            out.append(f'ds_read_b64_tr_b16 v[{r+4*m+2}:{r+4*m+3}], v5 offset:{off+512}')
        for tt in range(2):
            out.append(f'ds_read_b128 v[{r+8+4*tt}:{r+11+4*tt}], v{6+s} offset:{sl + tt*4096}')
        return out
    nbar = [0]
    def arrive():
        nbar[0] += 1
        A(f'''v_mov_b32 v14, {G.C_G}
v_mov_b32 v15, 1
s_mov_b64 exec, 1
ds_add_u32 v14, v15
s_mov_b64 exec, -1''')
    def poll():
        lp = G.uid('GB')
        A.label(lp)
        A(f'''ds_read_b32 v15, v14
s_waitcnt lgkmcnt(0)
v_readfirstlane_b32 s84, v15
s_cmp_ge_u32 s84, {4 * (G.cg_base + nbar[0])}
s_cbranch_scc0 {lp}''')
    G.mk_srd(G.R_C, G.S_WS, G.H_OFF, G.H_SZ)
    A(f'''s_mul_i32 s90, s3, 2560
s_add_u32 s90, s90, {G.H_STG}
v_and_b32 v12, 31, v1
v_mul_u32_u24 v12, 80, v12
v_lshrrev_b32 v13, 5, v1
v_lshl_add_u32 v12, v13, 3, v12
v_add_u32 v10, s90, v12
v_lshrrev_b32 v12, 2, v1
v_mul_u32_u24 v12, 80, v12
v_and_b32 v13, 3, v1
v_lshl_add_u32 v12, v13, 4, v12
v_add_u32 v11, s90, v12
s_mul_i32 s80, s85, 14
s_add_u32 s80, s80, s86
s_lshl_b32 s80, s80, 15
s_and_b32 s81, s3, 1
s_lshl_b32 s81, s81, 13
s_add_u32 s80, s80, s81
s_lshr_b32 s81, s3, 1
s_lshl_b32 s81, s81, 12
s_add_u32 s80, s80, s81
v_lshlrev_b32 v12, 4, v1
v_add_u32 v48, s80, v12''')
    def epi_list(p, tt):
        out = []
        base = 64 * p
        for q in range(4):
            for h in range(2):
                g0 = base + tt * 16 + 4 * q + 2 * h; u0 = g0 + 32
                t = 52 + 8 * h
                out += [f'v_accvgpr_read_b32 v{t}, a{g0}', f'v_accvgpr_read_b32 v{t+1}, a{g0+1}',
                        f'v_accvgpr_read_b32 v{t+2}, a{u0}', f'v_accvgpr_read_b32 v{t+3}, a{u0+1}',
                        f'v_cvt_pk_bf16_f32 v{t}, v{t}, v{t+1}', f'v_cvt_pk_bf16_f32 v{t+2}, v{t+2}, v{t+3}',
                        f'v_lshlrev_b32 v{t+4}, 16, v{t}', f'v_and_b32 v{t+5}, 0xffff0000, v{t}',
                        f'v_lshlrev_b32 v{t+6}, 16, v{t+2}', f'v_and_b32 v{t+7}, 0xffff0000, v{t+2}',
                        f'v_mul_f32 v{t+4}, v{t+4}, v{t+6}', f'v_mul_f32 v{t+5}, v{t+5}, v{t+7}',
                        f'v_cvt_pk_bf16_f32 v{50+h}, v{t+4}, v{t+5}']
            out.append(f'ds_write_b64 v10, v[50:51] offset:{16*q}')
        return out
    def epi_store(p, tt):
        A('s_waitcnt lgkmcnt(0)')
        for it in range(2):
            A(f'ds_read_b128 v[{68+8*tt+4*it}:{71+8*tt+4*it}], v11 offset:{it*16*80}')
        A('s_waitcnt lgkmcnt(0)')
        for it in range(2):
            A(f's_mov_b32 s81, {p*16384 + tt*2048 + it*1024}')
            vm.issue(('HS', p), f'buffer_store_dwordx4 v[{68+8*tt+4*it}:{71+8*tt+4*it}], v48, {G.srd(G.R_C)}, s81 offen sc1')
    def publish(p, cnt):
        lab = G.uid('HS')
        A(f'''v_mov_b32 v14, {cnt}
v_mov_b32 v15, 1
s_mov_b64 exec, 1
ds_add_rtn_u32 v15, v14, v15
s_mov_b64 exec, -1
s_waitcnt lgkmcnt(0)
v_readfirstlane_b32 s84, v15
s_cmp_lg_u32 s84, 3
s_cbranch_scc1 {lab}''')
        G.flag_set(1 + 2 * p, 'v14', 64)
        A.label(lab)
    lq = []
    def E(x, tag='o'):
        if callable(x): x(); return
        A(x)
        if x.startswith('ds_'): lq.append(tag)
    def lwait(tag):
        last = max([i for i, t in enumerate(lq) if t == tag], default=-1)
        if last < 0: return
        n = len(lq) - 1 - last
        A(f's_waitcnt lgkmcnt({min(n, 15)})')
        del lq[:last + 1]
    def W2(main, fill, gaps=None):
        n = gaps or len(main); k = len(fill); done = 0
        for i, m in enumerate(main):
            A(m)
            want = k if i >= n - 1 else (k * (i + 1) + n - 1) // n
            while done < want:
                f = fill[done]; done += 1
                if isinstance(f, tuple): E(f[0], f[1])
                else: E(f)
    FR3 = [16, 32, 88]
    def reads3(gs, s):
        k = 4 * gs + s
        r = FR3[k % 3]
        sl = (gs % 3) * 16384
        out = []
        for m in range(2):
            off = sl + m * 8192 + s * 2048
            out.append((f'ds_read_b64_tr_b16 v[{r+4*m}:{r+4*m+1}], v5 offset:{off}', k))
            out.append((f'ds_read_b64_tr_b16 v[{r+4*m+2}:{r+4*m+3}], v5 offset:{off+512}', k))
        for tt in range(2):
            out.append((f'ds_read_b128 v[{r+8+4*tt}:{r+11+4*tt}], v{6+s} offset:{sl + tt*4096}', k))
        return out
    vm.wait({('X', 0), ('W', 0)})
    arrive(); poll()
    for x in reads3(0, 0) + reads3(0, 1): E(x[0], x[1])
    pend = []
    epi = []
    for gs in range(14):
        p = gs // 7
        for s in range(4):
            k = 4 * gs + s
            lwait(k)
            r = FR3[k % 3]
            mf = []
            for m in range(2):
                for tt in range(2):
                    ac = 64 * p + m * 32 + tt * 16
                    mf.append(f'v_mfma_f32_32x32x16_bf16 a[{ac}:{ac+15}], v[{r+4*m}:{r+4*m+3}], v[{r+8+4*tt}:{r+11+4*tt}], a[{ac}:{ac+15}]')
            extra = []
            if epi:
                extra = epi[:28]; epi = epi[28:]
            if s < 3:
                W2(mf, (reads3(gs, s + 2) if s < 2 else []) + pend[:3] + extra, gaps=4)
                pend = pend[3:]
            elif gs < 13:
                vm.wait({('X', gs + 1), ('W', gs + 1)})
                arrive(); lq.append('o')
                for x in mf[:2]: A(x)
                for x in extra: E(x)
                poll(); del lq[:]
                if gs + 3 < 14:
                    pend = w_dma_list(G, vm, gs + 3, 'v2') + x_dma_list(gs + 3)
                W2(mf[2:], reads3(gs + 1, 0) + reads3(gs + 1, 1), gaps=2)
            else:
                for x in mf: A(x)
            if gs == 8 and s == 0:
                assert not epi
                epi_store(0, 0); del lq[:]
                epi = epi_list(0, 1)
            if gs == 9 and s == 1:
                assert not epi
                epi_store(0, 1); del lq[:]
            if gs == 11 and s == 0:
                vm.wait({('HS', 0)})
                publish(0, G.C_H0); del lq[:]
            if gs == 13 and s == 0:
                prod_idx(G, 'v84', 'v85')
                A('v_lshlrev_b32 v84, 7, v84')
                vm.issue('fH', f'buffer_load_dwordx2 v[86:87], v84, {G.srd(G.R_FLG)}, 0 offen sc0 sc1')
        if gs == 6:
            epi = epi_list(0, 0)
    G.stamp(3)
    arrive()
    for tt in range(2):
        for x in epi_list(1, tt): A(x)
        epi_store(1, tt)
    A(f'v_mov_b32 v14, {G.C_G}')
    poll()
    G.cg_base += nbar[0]
    G.stamp(4)
    G.publish1 = lambda: (vm.wait({('HS', 1)}), publish(1, G.C_H1))

def gemm2(G, vm):
    A = G.A
    G.mk_srd(G.R_A, G.S_WD, 0, 1792 * 896)
    A(f'''s_mul_i32 s89, s3, 24576
s_add_u32 s89, s89, {G.G_RING}''')
    A(f'''v_lshrrev_b32 v2, 3, v1
v_and_b32 v3, 7, v1
v_lshrrev_b32 v4, 1, v3
v_bfe_u32 v5, v1, 4, 1
v_lshlrev_b32 v5, 1, v5
v_xor_b32 v4, v4, v5
v_and_b32 v3, 1, v3
v_lshl_add_u32 v4, v4, 1, v3
v_lshlrev_b32 v4, 4, v4
v_mul_u32_u24 v2, 896, v2
v_add_u32 v12, v2, v4
s_lshr_b32 s80, s3, 1
s_mul_i32 s80, s80, {896*896}
s_and_b32 s81, s3, 1
s_mul_i32 s81, s81, {32*896}
s_add_u32 s80, s80, s81
s_lshl_b32 s81, s88, 7
s_add_u32 s80, s80, s81
v_add_u32 v12, s80, v12''')
    A(f'''s_lshr_b32 s80, s87, 1
s_mul_i32 s80, s80, 14
s_lshr_b32 s81, s3, 1
s_mul_i32 s81, s81, 7
s_add_u32 s80, s80, s81
s_lshl_b32 s80, s80, 15
s_and_b32 s81, s3, 1
s_lshl_b32 s81, s81, 13
s_add_u32 s80, s80, s81
s_and_b32 s81, s87, 1
s_lshl_b32 s81, s81, 12
s_add_u32 s80, s80, s81
v_lshrrev_b32 v2, 2, v1
v_lshlrev_b32 v2, 6, v2
v_and_b32 v3, 3, v1
v_bfe_u32 v4, v1, 4, 2
v_xor_b32 v3, v3, v4
v_lshl_add_u32 v13, v3, 4, v2
v_add_u32 v13, s80, v13''')
    def wd_list(st):
        out = []
        for i in range(4):
            def f(i=i):
                A(f's_add_u32 m0, s89, {(st%3)*8192 + 4096 + i*1024}\ns_mov_b32 s80, {((st%7)*128 + (st//7)*64 + 8*i)*896}')
                vm.issue(('D', st), f'buffer_load_dwordx4 v12, {G.srd(G.R_A)}, s80 offen lds')
            out.append(f)
        return out
    def h_list(st):
        out = []
        for i in range(4):
            def f(i=i):
                A(f's_add_u32 m0, s89, {(st%3)*8192 + i*1024}\ns_mov_b32 s80, {(st%7)*32768 + (st//7)*16384 + i*1024}')
                vm.issue(('H', st), f'buffer_load_dwordx4 v13, {G.srd(G.R_C)}, s80 offen sc1 lds')
            out.append(f)
        return out
    A(f'''v_cmp_le_u32 vcc, 14, v1
s_mov_b64 s[90:91], vcc
v_add_u32 v80, {2*256*128}, v84
s_lshl_b32 s80, s88, 5
s_add_u32 s80, s80, 512
v_add_u32 v81, s80, v1
v_lshlrev_b32 v81, 7, v81
v_cmp_le_u32 vcc, 32, v1
s_mov_b64 s[92:93], vcc''')
    def flag_block(voff, mask):
        lp = G.uid('FB')
        A.label(lp)
        A(f'''buffer_load_dwordx2 v[82:83], {voff}, {G.srd(G.R_FLG)}, 0 offen sc0 sc1
s_waitcnt vmcnt(0)
v_cmp_eq_u32 vcc, s12, v82
v_cmp_eq_u32 s[82:83], s13, v83
s_and_b64 vcc, vcc, s[82:83]
s_or_b64 vcc, vcc, {mask}
s_cmp_eq_u64 vcc, -1
s_cbranch_scc1 {lp}_ok
s_sleep 1
s_branch {lp}''')
        A.label(lp + '_ok')
    def flag_check(reg, mask, voff):
        lab = G.uid('FC')
        A(f'''v_cmp_eq_u32 vcc, s12, v{reg}
v_cmp_eq_u32 s[82:83], s13, v{reg+1}
s_and_b64 vcc, vcc, s[82:83]
s_or_b64 vcc, vcc, {mask}
s_cmp_eq_u64 vcc, -1
s_cbranch_scc1 {lab}''')
        flag_block(voff, mask)
        A.label(lab)
    for st in range(3):
        for f in wd_list(st): f()
    vm.wait({'fH'})
    flag_check(86, 's[90:91]', 'v84')
    G.stamp(5)
    for st in range(3):
        for f in h_list(st): f()
    A(f'''v_and_b32 v2, 31, v1
v_lshrrev_b32 v3, 5, v1
v_bfe_u32 v8, v1, 2, 2
v_xor_b32 v9, v3, v8
v_xor_b32 v10, 2, v9
v_lshlrev_b32 v2, 6, v2
v_lshl_add_u32 v4, v9, 4, v2
v_lshl_add_u32 v5, v10, 4, v2
v_add_u32 v4, s89, v4
v_add_u32 v5, s89, v5
v_lshrrev_b32 v2, 4, v1
v_and_b32 v3, 15, v1
v_lshrrev_b32 v8, 2, v3
v_and_b32 v3, 3, v3
v_lshrrev_b32 v9, 1, v2
v_and_b32 v2, 1, v2
v_lshl_add_u32 v9, v9, 3, v8
v_lshlrev_b32 v9, 7, v9
v_lshl_add_u32 v9, v3, 3, v9
v_lshl_add_u32 v9, v2, 5, v9
v_lshrrev_b32 v8, 1, v8
v_lshl_add_u32 v6, v8, 6, v9
v_xor_b32 v8, 1, v8
v_lshl_add_u32 v7, v8, 6, v9
v_add_u32 v6, s89, v6
v_add_u32 v7, s89, v7''')
    G.mk_srd(G.R_D, G.S_OUT, 0, G.XN_SZ)
    G.mk_srd(G.R_B, G.S_WS, G.AT_OFF, G.XN_SZ)
    A(f'''v_lshrrev_b32 v2, 2, v0
v_and_b32 v3, 3, v0
s_lshl_b32 s80, s87, 6
v_add_u32 v8, s80, v2
v_mul_u32_u24 v8, 896, v8
v_lshl_add_u32 v8, v3, 5, v8
s_lshl_b32 s80, s88, 7
v_add_u32 v88, s80, v8
s_lshl_b32 s80, s88, 6
s_lshl_b32 s81, s3, 4
s_add_u32 s80, s80, s81
v_lshrrev_b32 v8, 3, v1
v_add_u32 v8, s80, v8
v_lshlrev_b32 v8, 12, v8
v_and_b32 v9, 7, v1
v_lshl_add_u32 v8, v9, 4, v8
s_lshl_b32 s80, s87, 7
v_add_u32 v89, s80, v8''')
    for i in range(64): A(f'v_accvgpr_write_b32 a{i}, 0')
    FR = [16, 48]
    def reads(st, buf):
        base = (st % 3) * 8192
        out = []
        for sp in range(2):
            r = FR[buf] + sp * 16
            for dt in range(2):
                off = base + 4096 + sp * 2048
                out.append(f'ds_read_b64_tr_b16 v[{r+4*dt}:{r+4*dt+1}], v{6+dt} offset:{off}')
                out.append(f'ds_read_b64_tr_b16 v[{r+4*dt+2}:{r+4*dt+3}], v{6+dt} offset:{off+512}')
            for tt in range(2):
                out.append(f'ds_read_b128 v[{r+8+4*tt}:{r+11+4*tt}], v{4+sp} offset:{base + tt*2048}')
        return out
    G.publish1()
    vm.wait({('H', 0), ('D', 0)})
    for x in reads(0, 0): A(x)
    buf = 0
    for st in range(14):
        A('s_waitcnt lgkmcnt(0)')
        fill = []
        if st < 13:
            if st in (5, 6): G.stamp2(28 + 2 * (st - 5))
            vm.wait({('H', st + 1), ('D', st + 1)})
            if st in (5,): G.stamp2(29)
            fill += reads(st + 1, 1 - buf)
        if st == 2:
            vm.issue('fB', f'buffer_load_dwordx2 v[90:91], v80, {G.srd(G.R_FLG)}, 0 offen sc0 sc1')
        if st == 4:
            vm.wait({'fB'})
            flag_check(90, 's[90:91]', 'v80')
        if st == 9:
            vm.issue('fA', f'buffer_load_dwordx2 v[86:87], v81, {G.srd(G.R_FLG)}, 0 offen sc0 sc1')
            vm.issue('x', f'buffer_load_dwordx4 v[96:99], v88, {G.srd(G.R_X)}, 0 offen')
            vm.issue('x', f'buffer_load_dwordx4 v[100:103], v88, {G.srd(G.R_X)}, 0 offen offset:16')
        if st == 12:
            vm.wait({'fA'})
            flag_check(86, 's[92:93]', 'v81')
            vm.issue('at', f'buffer_load_dwordx4 v[104:107], v89, {G.srd(G.R_B)}, 0 offen sc1')
            A(f's_mov_b32 s80, {8*4096}')
            vm.issue('at', f'buffer_load_dwordx4 v[108:111], v89, {G.srd(G.R_B)}, s80 offen sc1')
        if st + 3 < 14:
            fill += [x for pr in zip(h_list(st + 3), wd_list(st + 3)) for x in pr]
        mf = []
        for sp in range(2):
            r = FR[buf] + sp * 16
            for dt in range(2):
                for tt in range(2):
                    ac = (dt * 2 + tt) * 16
                    mf.append(f'v_mfma_f32_32x32x16_bf16 a[{ac}:{ac+15}], v[{r+4*dt}:{r+4*dt+3}], v[{r+8+4*tt}:{r+11+4*tt}], a[{ac}:{ac+15}]')
        weave(A, mf, fill)
        buf = 1 - buf
    G.stamp(6)
    A(f'''v_and_b32 v2, 31, v1
v_mul_u32_u24 v2, 272, v2
v_lshrrev_b32 v3, 5, v1
v_lshl_add_u32 v2, v3, 4, v2
v_add_u32 v2, s89, v2
v_lshlrev_b32 v7, 4, v1
v_add_u32 v7, s89, v7''')
    for dt in range(2):
        for tt in range(2):
            ac = (dt * 2 + tt) * 16
            for q in range(4):
                A(f'ds_write_b128 v2, a[{ac+4*q}:{ac+4*q+3}] offset:{tt*32*272 + (32*dt + 8*q)*4}')
    A('''s_waitcnt vmcnt(0)
ds_write_b128 v7, v[104:107] offset:17408
ds_write_b128 v7, v[108:111] offset:18432''')
    G.cg_base += 1
    G.lds_sync(G.C_G, 4 * G.cg_base, 'v6', 'v7')
    G.stamp(7)
    A(f'''v_lshrrev_b32 v3, 2, v0
v_and_b32 v4, 3, v0
v_mul_u32_u24 v6, 272, v3
v_lshl_add_u32 v6, v4, 6, v6
v_add_u32 v6, {G.G_RING}, v6
v_mul_u32_u24 v7, 24576, v4
v_lshl_add_u32 v7, v3, 1, v7
v_add_u32 v7, {G.G_RING + 17408}, v7
v_add_u32 v24, 49152, v6''')
    for w in range(4):
        for c in range(4):
            r = 32 + w * 16 + c * 4
            if r >= 88: r += 24
            A(f'ds_read_b128 v[{r}:{r+3}], {"v6" if w < 2 else "v24"} offset:{(w&1)*24576 + c*16}')
    for e in range(16):
        A(f'ds_read_u16 v{8+e}, v7 offset:{e*128}')
    A('s_waitcnt lgkmcnt(0)')
    def R3(e): return 80 + e if e < 8 else 104 + e
    for e in range(16):
        A(f'''v_add_f32 v{32+e}, v{32+e}, v{48+e}
v_add_f32 v{64+e}, v{64+e}, v{R3(e)}''')
    for e in range(16):
        A(f'v_add_f32 v{32+e}, v{32+e}, v{64+e}')
    for p in range(8):
        e0, e1 = 2 * p, 2 * p + 1
        xr = 96 + p
        A(f'''v_cvt_pk_bf16_f32 v{32+e0}, v{32+e0}, v{32+e1}
v_lshlrev_b32 v{48+e0}, 16, v{xr}
v_and_b32 v{48+e1}, 0xffff0000, v{xr}
v_lshlrev_b32 v{8+e0}, 16, v{8+e0}
v_lshlrev_b32 v{8+e1}, 16, v{8+e1}
v_add_f32 v{48+e0}, v{48+e0}, v{8+e0}
v_add_f32 v{48+e1}, v{48+e1}, v{8+e1}
v_cvt_pk_bf16_f32 v{48+e0}, v{48+e0}, v{48+e1}
v_lshlrev_b32 v{64+e0}, 16, v{48+e0}
v_and_b32 v{64+e1}, 0xffff0000, v{48+e0}
v_and_b32 v{32+e1}, 0xffff0000, v{32+e0}
v_lshlrev_b32 v{32+e0}, 16, v{32+e0}
v_add_f32 v{64+e0}, v{64+e0}, v{32+e0}
v_add_f32 v{64+e1}, v{64+e1}, v{32+e1}
v_cvt_pk_bf16_f32 v{120+p}, v{64+e0}, v{64+e1}''')
    A(f'''buffer_store_dwordx4 v[120:123], v88, {G.srd(G.R_D)}, 0 offen
buffer_store_dwordx4 v[124:127], v88, {G.srd(G.R_D)}, 0 offen offset:16''')
    G.stamp(8)
```
